```python
import torch

def _softmax(x, axis=-1):
    return torch.softmax(x, dim=axis)

def _gelu(x):
    return torch.nn.functional.gelu(x, approximate='tanh')

def _silu(x):
    return torch.nn.functional.silu(x)

def _sigmoid(x):
    return torch.sigmoid(x)

def _layernorm(x, axis=-1, eps=1e-05):
    m = x.mean(dim=axis, keepdim=True)
    v = x.var(dim=axis, keepdim=True, unbiased=False)
    return (x - m) / torch.sqrt(v + eps)

def _scatter_add(tgt, idx, src, axis=0):
    return tgt.clone().index_add_(axis, idx, src)

def _segment_sum(src, seg, n):
    out = torch.zeros((n,) + src.shape[1:], dtype=src.dtype)
    return out.index_add_(0, seg, src)

def _pad(x, pw):
    flat = tuple((v for pair in reversed(pw) for v in pair))
    return torch.nn.functional.pad(x, flat)
kernel_name = 'adaLN_cond__mha_block_cached__glu_gated_geglu__decode'

def setup_inputs():

    _w = lambda a: (lambda t: t.to(torch.bfloat16) if t.is_floating_point() else t)(torch.as_tensor(a))

    def _A_setup():
        B, Sq, D = (1, 1, 640)
        H, Sk, Dh = (32, 32768, 192)
        return {'x': _w((lambda *s: torch.randn(*s, dtype=torch.bfloat16) * 0.05)(B, Sq, D)), 'k_cache': _w((lambda *s: torch.randn(*s, dtype=torch.bfloat16) * 0.8)(B, H, Sk, Dh)), 'v_cache': _w((lambda *s: torch.randn(*s, dtype=torch.bfloat16) * 3.2)(B, H, Sk, Dh)), 'wq': _w((lambda *s: torch.randn(*s, dtype=torch.bfloat16) * 0.8)(D, H * Dh) * D ** (-0.5)), 'wo': _w((lambda *s: torch.randn(*s, dtype=torch.bfloat16) * 3.2)(H * Dh, D) * (H * Dh) ** (-0.5))}
    _A_in = _A_setup()

    def _B_setup():
        B, S, Dm, Df = (1, 1, 640, 1536)
        return {'x': _w((lambda *s: torch.randn(*s, dtype=torch.bfloat16) * 0.05)(B, S, Dm)), 'w_gate': _w((lambda *s: torch.randn(*s, dtype=torch.bfloat16) * 3.2)(Dm, Df) * Dm ** (-0.5)), 'w_up': _w((lambda *s: torch.randn(*s, dtype=torch.bfloat16) * 3.2)(Dm, Df) * Dm ** (-0.5)), 'w_down': _w((lambda *s: torch.randn(*s, dtype=torch.bfloat16) * 3.2)(Df, Dm) * Df ** (-0.5))}
    _B_in = _B_setup()
    return {'A_x': _A_in['x'], 'A_k_cache': _A_in['k_cache'], 'A_v_cache': _A_in['v_cache'], 'A_wq': _A_in['wq'], 'A_wo': _A_in['wo'], 'B_x': _B_in['x'], 'B_w_gate': _B_in['w_gate'], 'B_w_up': _B_in['w_up'], 'B_w_down': _B_in['w_down'], 'c': _w((lambda *s: torch.randn(*s, dtype=torch.bfloat16) * 0.4)(1, 640) * 8.0), 'w_mod': _w((lambda *s: torch.randn(*s, dtype=torch.bfloat16) * 0.4)(640, 6 * 640) * 640 ** (-0.5) * 8.0)}

def reference(A_x, A_k_cache, A_v_cache, A_wq, A_wo, B_x, B_w_gate, B_w_up, B_w_down, c, w_mod):

    def _A_ref(x, k_cache, v_cache, wq, wo):
        B, Sq, D = x.shape
        H, Dh = (32, 192)
        q = (lambda x, *d: x.permute(*d))((x @ wq).reshape(B, Sq, H, Dh), 0, 2, 1, 3)
        scores = torch.einsum('bhqd,bhkd->bhqk', q, k_cache) * Dh ** (-0.5)
        p = _softmax(scores, axis=-1)
        o = torch.einsum('bhqk,bhkd->bhqd', p, v_cache)
        return (lambda x, *d: x.permute(*d))(o, 0, 2, 1, 3).reshape(B, Sq, H * Dh) @ wo

    def _B_ref(x, w_gate, w_up, w_down):
        g = torch.einsum('bsd,df->bsf', x, w_gate)
        u = torch.einsum('bsd,df->bsf', x, w_up)
        h = _gelu(g) * u
        return torch.einsum('bsf,fd->bsd', h, w_down)
    x = A_x
    mod = (_silu(c) @ w_mod).reshape(c.shape[0], 6, 1, -1)
    sa, ca, ga, sb, cb, gb = (mod[:, 0].clone(), mod[:, 1].clone(), mod[:, 2].clone(), mod[:, 3].clone(), mod[:, 4].clone(), mod[:, 5].clone())
    h = _layernorm(x, axis=-1) * (1 + ca) + sa
    x = x + ga * _A_ref(h, A_k_cache, A_v_cache, A_wq, A_wo)
    h = _layernorm(x, axis=-1) * (1 + cb) + sb
    x = x + gb * _B_ref(h, B_w_gate, B_w_up, B_w_down)
    return x
```

```python
import re

TRANS = ('v_exp_f32', 'v_log_f32', 'v_rcp_f32', 'v_rsq_f32', 'v_sqrt_f32', 'v_sin_f32', 'v_cos_f32', 'v_rcp_iflag_f32')

def _regs(tok):
    tok = tok.strip()
    tok = re.sub(r'^-', '', tok)
    m = re.match(r'^abs\((.*)\)$', tok)
    if m: tok = m.group(1)
    tok = tok.strip('|')
    m = re.match(r'^([vas])\[(\d+):(\d+)\]$', tok)
    if m: return {'%s%d' % (m.group(1), i) for i in range(int(m.group(2)), int(m.group(3)) + 1)}
    m = re.match(r'^([vas])(\d+)$', tok)
    if m: return {tok}
    if tok in ('vcc', 'vcc_lo', 'vcc_hi'): return {'vcc'}
    if tok in ('exec', 'exec_lo', 'exec_hi'): return {'exec'}
    if tok == 'm0': return {'m0'}
    return set()

class Ins:
    def __init__(self, text):
        self.text = text
        t = text.split(';')[0].strip()
        self.label = None; self.op = None
        self.w = set(); self.r = set(); self.kind = None; self.dpp = False
        self.states = 1; self.target = None
        if not t or t.startswith('.'):
            self.states = 0; self.kind = 'dir'; return
        if t.endswith(':'):
            self.label = t[:-1]; self.states = 0; self.kind = 'label'; return
        parts = t.split(None, 1)
        op = parts[0]; self.op = op
        rest = parts[1] if len(parts) > 1 else ''
        ops = [x.strip() for x in re.split(r',(?![^\[]*\])', rest)] if rest else []
        mods = ''
        if ops:
            sp = re.split(r'\s+', ops[-1], 1)
            ops[-1] = sp[0]; mods = sp[1] if len(sp) > 1 else ''
        self.ops = ops; self.mods = mods
        base = re.sub(r'_(e32|e64|dpp|sdwa)$', '', op)
        self.base = base
        R = [_regs(o) for o in ops]
        allr = lambda l: set().union(*l) if l else set()
        if op.startswith('v_mfma'):
            self.kind = 'mfma'; self.w = R[0]; self.rA = R[1] | R[2]; self.rC = R[3]; self.r = allr(R[1:])
            self.passes = 8 if '32x32' in op else 4
        elif op.startswith('v_'):
            self.kind = 'valu'
            self.dpp = ('quad_perm' in mods or 'row_' in mods or 'wave_' in mods)
            if base.startswith('v_cmp'):
                self.w = R[0]; self.r = allr(R[1:])
            elif base in ('v_permlane32_swap_b32', 'v_permlane16_swap_b32'):
                self.w = R[0] | R[1]; self.r = R[0] | R[1]
            elif base in ('v_fmac_f32', 'v_dot2c_f32_bf16', 'v_writelane_b32', 'v_pk_fmac_f16'):
                self.w = R[0]; self.r = allr(R)
            elif base in ('v_add_co_u32', 'v_sub_co_u32', 'v_addc_co_u32', 'v_subb_co_u32', 'v_div_scale_f32'):
                self.w = R[0] | R[1]; self.r = allr(R[2:])
            elif base == 'v_nop':
                pass
            else:
                self.w = R[0]; self.r = allr(R[1:])
                if self.dpp and 'bound_ctrl' not in mods: self.r |= R[0]
            if base == 'v_div_fmas_f32': self.r |= {'vcc'}
        elif op.startswith('buffer_') or op.startswith('global_'):
            self.kind = 'vmem'
            if op in ('buffer_wbl2', 'buffer_inv'): pass
            elif '_load' in op:
                if ' lds' in (' ' + mods): self.r = allr(R) | {'m0'}
                else: self.w = R[0]; self.r = allr(R[1:])
            elif '_store' in op:
                self.r = allr(R)
                di = 0 if op.startswith('buffer_') else 1
                self.sdata = R[di] if ('x4' in op or 'x3' in op) else set()
            elif '_atomic' in op:
                self.r = allr(R)
                if 'sc0' in mods: self.w = R[0]
        elif op.startswith('ds_'):
            self.kind = 'ds'
            if op.startswith('ds_read') or op.startswith('ds_bpermute') or op.startswith('ds_permute') or op.startswith('ds_swizzle') or '_rtn' in op:
                self.w = R[0]; self.r = allr(R[1:])
            else: self.r = allr(R)
        elif op.startswith('s_'):
            self.kind = 'salu'
            if op == 's_nop': self.states = int(ops[0], 0) + 1
            elif op.startswith('s_cbranch') or op == 's_branch': self.target = ops[0]
            elif op.startswith('s_cmp') or op in ('s_waitcnt', 's_barrier', 's_endpgm', 's_sleep', 's_setprio'): self.r = allr(R)
            elif 'saveexec' in op: self.w = R[0] | {'exec'}; self.r = allr(R[1:]) | {'exec'}
            else:
                self.w = R[0] if R else set(); self.r = allr(R[1:])
        else:
            raise ValueError('unknown instruction: ' + text)

def need(p, c):
    n = 0
    isv = lambda s: {x for x in s if x[0] in 'va' and x not in ('vcc',)}
    iss = lambda s: {x for x in s if x[0] == 's' or x == 'vcc'}
    if p.kind == 'valu':
        pw = isv(p.w); ps = iss(p.w)
        if c.kind == 'valu':
            if c.dpp and (pw & c.r): n = max(n, 2)
            if c.base in ('v_readlane_b32', 'v_readfirstlane_b32') and (pw & c.r): n = max(n, 1)
            if c.base.startswith('v_permlane') and (pw & c.r): n = max(n, 2)
            if ps & c.r:
                n = max(n, 2)
                if c.base in ('v_readlane_b32', 'v_writelane_b32', 'v_div_fmas_f32'): n = max(n, 4)
            if c.base == 'v_cndmask_b32' and 'vcc' in ps and len(c.ops) < 4: n = max(n, 2)
            if p.base in TRANS and (pw & c.r): n = max(n, 1)
            if p.base.startswith('v_dot2') and (pw & (c.r | c.w)):
                same_c = (c.base == p.base and ((c.base == 'v_dot2c_f32_bf16' and not (pw & (_regs(c.ops[1]) | _regs(c.ops[2]))))
                          or (c.base == 'v_dot2_f32_bf16' and not (pw & (_regs(c.ops[1]) | _regs(c.ops[2]))))))
                if not same_c: n = max(n, 3)
            if ('op_sel' in p.mods or 'dst_sel' in p.mods) and not p.base.startswith('v_pk_') and (pw & (c.r | c.w)): n = max(n, 1)
            if 'exec' in p.w and c.dpp: n = max(n, 5)
        if c.kind == 'mfma':
            if pw & c.r: n = max(n, 3 if p.base.startswith('v_dot2') else 2)
            if 'exec' in p.w: n = max(n, 4)
        if c.kind == 'vmem' and (ps & c.r): n = max(n, 5)
        if c.kind in ('vmem', 'ds') and p.base.startswith('v_dot2') and (pw & c.r): n = max(n, 3)
        if c.kind in ('vmem', 'ds') and p.base in TRANS and (pw & c.r): n = max(n, 1)
        if c.kind == 'salu' and (ps & c.r): n = max(n, 1)
    if p.kind == 'mfma':
        big = {4: 8, 8: 12}[p.passes]; ov = {4: 6, 8: 10}[p.passes]; war = {4: 3, 8: 7}[p.passes]
        if c.kind == 'mfma':
            if p.w & c.rA: n = max(n, big)
            if (p.w & c.rC) and not (p.w == c.rC and p.passes == c.passes): n = max(n, ov)
            if (p.w & c.w) and not (p.w == c.rC and p.passes == c.passes): n = max(n, ov)
        elif c.kind in ('valu', 'vmem', 'ds'):
            if p.w & (c.r | c.w): n = max(n, big)
            if c.kind == 'valu' and (p.rC & c.w): n = max(n, war)
    if p.kind == 'vmem' and getattr(p, 'sdata', None):
        if c.kind == 'valu' and (p.sdata & c.w): n = max(n, 2)
        elif c.kind in ('vmem', 'ds', 'mfma') and (p.sdata & c.w): n = max(n, 1)
    if p.kind == 'salu' and 'm0' in p.w and c.kind in ('vmem', 'ds', 'valu') and 'm0' in c.r: n = max(n, 1)
    return n

MAXW = 12
def fix_hazards(lines):
    ins = [Ins(l) for l in lines]
    back = {}
    for _pass in range(6):
        out = []; win = []
        fwd = {}; newback = {}; seen = set(); added = 0
        alts = []
        def adv(w, k): return [(i, d + k) for (i, d) in w if d + k < MAXW + 1]
        dead = False
        for I in ins:
            if I.kind == 'label':
                seen.add(I.label)
                inc = fwd.pop(I.label, []) + back.get(I.label, [])
                if dead: win = []
                for w in inc: win = win + w
                dead = False
                out.append(I); continue
            if I.kind == 'dir':
                out.append(I); continue
            req = 0
            for (p, d) in win:
                k = need(p, I) - d
                if k > req: req = k
            if req > 0:
                N = Ins('s_nop %d' % (req - 1)); N.auto = True
                out.append(N); win = adv(win, req); added += 1
            out.append(I)
            win = adv(win, I.states)
            if I.kind in ('valu', 'mfma', 'vmem', 'salu') and (I.w or getattr(I, 'sdata', None) or I.kind == 'mfma'):
                win.append((I, 0))
            if I.target:
                snap = list(win)
                if I.target in seen: newback.setdefault(I.target, []).append(snap)
                else: fwd.setdefault(I.target, []).append(snap)
                if I.op == 's_branch': dead = True
            if I.op == 's_endpgm': dead = True
        ins = out
        stable = (added == 0 and _pass > 0)
        back = newback
        if stable: break
    else:
        raise RuntimeError('hazard pass did not converge')
    return [i.text for i in ins]

class Asm:
    def __init__(self):
        self.L = []
    def __call__(self, text):
        for l in text.split('\n'):
            l = l.strip()
            if l: self.L.append(l)
    def text(self):
        o = []
        for l in fix_hazards(self.L):
            o.append(l if (l.endswith(':') or l.startswith('.') or l.startswith(';')) else '    ' + l)
        return '\n'.join(o) + '\n'
```

```python
import sys
sys.path.insert(0, 'gen')
from asmlib import Asm
NAME = 'adaLN_cond__mha_block_cached__glu_gated_geglu__decode'

HEADER = open('cdna_kernels/%s.s.ref' % NAME).read().split('; Override launch')[0]

WS_EPOCH = 0
WS_M = 0x1000
WS_Q = 0x20000
WS_O = 0x60000
WS_Y = 0xA0000
WS_D = 0xB0000
WS_STAMP = 0x100000
WS_SIZE = 0x200000
L_RED = 0
L_ML = 12288
L_H = 12352
L_Q = 12800
L_O = 13312
L_X = 16384
L_ST = 19456
L_RED2 = 20480
LDS_BYTES = 32768
LOG2E = 0x3FB8AA3B
SCALE = 0x3D93CD3A

def gen(NB=2, kvflags='nt', wflags='nt', diag=False, order='inter', w3pre=0, spin=1 << 21):
    A = Asm()
    sWV = 's3'
    pX, pK, pV, pWQ, pWO, pG, pU = 16, 18, 20, 22, 24, 28, 30
    pDN, pC, pWM, pOUT, pDBG, pWS = 32, 34, 36, 38, 40, 42
    K_SRD, V_SRD, WS_SRD, A_SRD, B_SRD = 44, 48, 52, 56, 60
    sT = [64, 65, 66, 67]
    sH, sS, sKP = 's68', 's69', 's70'
    sM, sML = 's71', 's72'
    sOFF, sCNT, sSPIN = 's73', 's74', 's75'
    sA, sB, sC_, sD = 's76', 's77', 's78', 's79'
    sW = list(range(80, 88))
    sTS = 90
    def sp(i): return 's[%d:%d]' % (i, i + 1)
    def sq(i): return 's[%d:%d]' % (i, i + 3)
    def vq(i, n=4, k='v'): return '%s[%d:%d]' % (k, i, i + n - 1)
    vL, vG, vC, vKV = 0, 1, 2, 3
    vMK = [4, 5, 6, 7]
    vFF, vLG2, vSTAMP, vLS = 8, 9, 10, 11
    vQ = 12
    vACC = 24
    vA0, vA1 = 36, 40
    vT = 44
    vK0 = 96
    assert vK0 + 24 * NB <= 256
    aV0 = 0
    aW0 = 24 * NB
    assert aW0 + 128 <= 256
    T = lambda i: 'v%d' % (vT + i)
    stampn = [0]
    def stamp(idx):
        if diag:
            A('s_memrealtime %s\ns_waitcnt lgkmcnt(0)\nv_writelane_b32 v%d, s%d, %d' % (sp(sTS), vSTAMP, sTS, idx))
    def srd(r, p, nbytes):
        A('s_mov_b32 s%d, s%d\ns_mov_b32 s%d, s%d\ns_mov_b32 s%d, %d\ns_mov_b32 s%d, 0x20000' % (r, p, r + 1, p + 1, r + 2, nbytes, r + 3))
    def enc(r):
        for i in range(4): A('v_bfi_b32 v%d, v%d, s%d, v%d' % (r + i, vFF, sT[i], r + i))
    def chk(acc, r, first):
        for i in range(4):
            if first and i == 0: A('v_xor_b32 %s, s%d, v%d' % (acc, sT[0], r))
            else: A('v_bitop3_b32 %s, v%d, s%d, %s bitop3:0xbe' % (acc, r + i, sT[i], acc))
    lab = [0]
    def poll(issue, regs, acc, execmask=None):
        lab[0] += 1; n = lab[0]
        if execmask is not None: setexec(execmask)
        A('s_mov_b32 %s, 0' % sSPIN)
        A('L_poll%d:' % n)
        issue()
        A('s_add_u32 %s, %s, 1\ns_cmp_gt_u32 %s, %d\ns_cbranch_scc1 L_done' % (sSPIN, sSPIN, sSPIN, spin))
        A('s_waitcnt vmcnt(0)')
        for i, r in enumerate(regs): chk(acc, r, i == 0)
        A('v_and_b32 %s, v%d, %s' % (acc, vFF, acc))
        A('v_cmp_ne_u32 vcc, 0, %s' % acc)
        A('s_cbranch_vccnz L_poll%d' % n)
        for r in regs:
            for i in range(4): A('v_and_b32 v%d, 0xffffff00, v%d' % (r + i, r + i))
    def setexec(m):
        if m == -1: A('s_mov_b64 exec, -1')
        else: A('s_mov_b32 exec_lo, 0x%x\ns_mov_b32 exec_hi, 0x%x' % (m & 0xffffffff, m >> 32))
    def sum_gran(dst, regs):
        for i in range(4):
            A('v_add_f32 v%d, v%d, v%d' % (dst + i, regs[0] + i, regs[1] + i))
        for r in regs[2:]:
            for i in range(4): A('v_add_f32 v%d, v%d, v%d' % (dst + i, dst + i, r + i))
    def rnd4(r, t):
        A('v_cvt_pk_bf16_f32 v%d, v%d, v%d\nv_cvt_pk_bf16_f32 v%d, v%d, v%d' % (t, r, r + 1, t + 1, r + 2, r + 3))
        A('v_lshlrev_b32 v%d, 16, v%d\nv_and_b32 v%d, 0xffff0000, v%d' % (r, t, r + 1, t))
        A('v_lshlrev_b32 v%d, 16, v%d\nv_and_b32 v%d, 0xffff0000, v%d' % (r + 2, t + 1, r + 3, t + 1))
    def rnd1(r):
        A('v_cvt_pk_bf16_f32 v%d, v%d, v%d\nv_lshlrev_b32 v%d, 16, v%d' % (r, r, r, r, r))
    def unpack4(dst, src):
        A('v_lshlrev_b32 v%d, 16, v%d\nv_and_b32 v%d, 0xffff0000, v%d' % (dst, src, dst + 1, src))
        A('v_lshlrev_b32 v%d, 16, v%d\nv_and_b32 v%d, 0xffff0000, v%d' % (dst + 2, src + 1, dst + 3, src + 1))
    def selmfma(acc, sel, breg, alt, first=False):
        a = vA1 if alt else vA0
        for r in range(4): A('v_and_b32 v%d, v%d, v%d' % (a + r, vMK[r], sel))
        A('v_mfma_f32_16x16x32_bf16 %s, %s, %s, %s' % (vq(acc), vq(a), breg, '0' if first else vq(acc)))
    DPP = 'row_mask:0xf bank_mask:0xf'
    def wave_sum(r, t):
        A('v_add_f32_dpp v%d, v%d, v%d quad_perm:[1,0,3,2] %s' % (r, r, r, DPP))
        A('v_add_f32_dpp v%d, v%d, v%d quad_perm:[2,3,0,1] %s' % (r, r, r, DPP))
        A('v_add_f32_dpp v%d, v%d, v%d row_half_mirror %s' % (r, r, r, DPP))
        A('v_add_f32_dpp v%d, v%d, v%d row_ror:8 %s' % (r, r, r, DPP))
        rows_op('v_add_f32', r, t)
    def rows_op(op, r, t):
        A('v_mov_b32 v%d, v%d\nv_permlane16_swap_b32 v%d, v%d\n%s v%d, v%d, v%d' % (t, r, r, t, op, r, r, t))
        A('v_mov_b32 v%d, v%d\nv_permlane32_swap_b32 v%d, v%d\n%s v%d, v%d, v%d' % (t, r, r, t, op, r, r, t))
    def pair_sum(r, t):
        for i in range(4): A('v_mov_b32 v%d, v%d' % (t + i, r + i))
        for i in range(4): A('v_permlane32_swap_b32 v%d, v%d' % (r + i, t + i))
        for i in range(4): A('v_add_f32_dpp v%d, v%d, v%d row_ror:8 %s' % (r + i, t + i, r + i, DPP))
    def red16(dst, base, tmp, vaddr):
        regs = [tmp + 4 * i for i in range(8)]
        for w in range(4):
            A('ds_read_b128 %s, v%d offset:%d' % (vq(regs[2 * w]), vaddr, base + w * 1024))
            A('ds_read_b128 %s, v%d offset:%d' % (vq(regs[2 * w + 1]), vaddr, base + w * 1024 + 640))
        A('s_waitcnt lgkmcnt(0)')
        sum_gran(dst, regs)
    def l1addr(dst, j, t):
        A('v_and_b32 v%d, 1, v%d\nv_bfe_u32 v%d, v%d, 1, 3\nv_lshlrev_b32 v%d, 4, v%d\nv_lshl_add_u32 v%d, v%d, 8, v%d' % (dst, j, t, j, t, t, dst, dst, t))

    A('; @launch grid=(256,1,1) block=(256,1,1) lds=%d' % LDS_BYTES)
    A('.amdgcn_target "amdgcn-amd-amdhsa--gfx950"\n.text\n.globl %s_kernel\n.p2align 8\n.type %s_kernel,@function\n%s_kernel:' % (NAME, NAME, NAME))
    A('s_cmp_ge_u32 s2, 256\ns_cbranch_scc1 L_done')
    A('s_load_dwordx16 s[16:31], s[0:1], 0\ns_load_dwordx8 s[32:39], s[0:1], 64\ns_load_dwordx4 s[40:43], s[0:1], 96')
    A('v_lshrrev_b32 v1, 6, v0\nv_readfirstlane_b32 %s, v1\nv_and_b32 v0, 63, v0' % sWV)
    if diag: A('v_mov_b32 v%d, 0' % vSTAMP)
    A('v_lshrrev_b32 v%d, 3, v0\nv_and_b32 v%d, 7, v0' % (vG, vC))
    A('v_mul_u32_u24 v%d, 384, v%d\nv_lshl_add_u32 v%d, v%d, 4, v%d' % (vKV, vG, vKV, vC, vKV))
    A('v_and_b32 %s, 1, v%d\nv_lshlrev_b32 %s, 4, %s\nv_mov_b32 %s, 0xffff\nv_lshlrev_b32 %s, %s, %s' % (T(0), vC, T(0), T(0), T(1), T(1), T(0), T(1)))
    A('v_lshrrev_b32 %s, 1, v%d' % (T(0), vC))
    for r in range(4):
        A('v_cmp_eq_u32 vcc, %d, %s\nv_cndmask_b32 v%d, 0, %s, vcc' % (r, T(0), vMK[r], T(1)))
    A('v_mov_b32 v%d, 0xff\nv_mov_b32 v%d, 0x%x' % (vFF, vLG2, LOG2E))
    A('s_lshr_b32 %s, s2, 3\ns_and_b32 %s, s2, 7' % (sH, sS))
    A('s_lshl_b32 %s, %s, 2\ns_add_u32 %s, %s, %s\ns_and_b32 %s, %s, 31' % (sKP, sS, sKP, sKP, sH, sKP, sKP))
    A('s_waitcnt lgkmcnt(0)')
    A('s_load_dword s%d, %s, %d' % (sT[0], sp(pWS), WS_EPOCH))
    stamp(0)
    A('s_mul_i32 %s, %s, 12582912' % (sA, sH))
    for (r, p) in ((K_SRD, pK), (V_SRD, pV)):
        A('s_add_u32 s%d, s%d, %s\ns_addc_u32 s%d, s%d, 0\ns_mov_b32 s%d, 12582912\ns_mov_b32 s%d, 0x20000' % (r, p, sA, r + 1, p + 1, r + 2, r + 3))
    srd(WS_SRD, pWS, WS_SIZE)
    aM = aW0; vCs = vT + 8
    A('s_cmp_ge_u32 s2, 240\ns_cbranch_scc1 L_noMload')
    srd(A_SRD, pC, 1280); srd(B_SRD, pWM, 4915200)
    A('s_and_b32 %s, s2, 3\ns_mul_i32 %s, %s, 160\ns_mul_i32 %s, %s, 40\ns_add_u32 %s, %s, %s' % (sA, sA, sA, sB, sWV, sA, sA, sB))
    A('s_lshl_b32 %s, %s, 1\nv_lshlrev_b32 %s, 1, v%d' % (sB, sA, T(0), vG))
    for t in range(5): A('buffer_load_ushort v%d, %s, %s, %s offen offset:%d' % (vCs + t, T(0), sq(A_SRD), sB, 16 * t))
    A('s_mul_i32 %s, %s, 7680\ns_lshr_b32 %s, s2, 2\ns_lshl_b32 %s, %s, 7\ns_add_u32 %s, %s, %s' % (sA, sA, sB, sB, sB, sA, sA, sB))
    A('v_mul_u32_u24 %s, 7680, v%d\nv_lshl_add_u32 %s, v%d, 4, %s' % (T(1), vG, T(1), vC, T(1)))
    for t in range(5):
        A('buffer_load_dwordx4 %s, %s, %s, %s offen %s' % (vq(aM + 4 * t, 4, 'a'), T(1), sq(B_SRD), sA, wflags))
        if t < 4: A('s_add_u32 %s, %s, 61440' % (sA, sA))
    A('L_noMload:')
    if order == 'inter':
        A('s_lshl_b32 %s, %s, 2\ns_add_u32 %s, %s, %s\ns_mul_i32 %s, %s, 6144' % (sOFF, sS, sOFF, sOFF, sWV, sOFF, sOFF)); STEP = 6144 * 32
    else:
        A('s_mul_i32 %s, %s, 6144\ns_mul_i32 %s, %s, %d\ns_add_u32 %s, %s, %s' % (sOFF, sWV, sA, sS, 256 * 6144, sOFF, sOFF, sA)); STEP = 6144 * 4
    def issueK(b):
        for i in range(6):
            A('buffer_load_dwordx4 %s, v%d, %s, %s offen offset:%d %s' % (vq(vK0 + 24 * b + 4 * i), vKV, sq(K_SRD), sOFF, (i // 3) * 3072 + (i % 3) * 128, kvflags))
    def issueV(b):
        for i in range(6):
            A('buffer_load_dwordx4 %s, v%d, %s, %s offen offset:%d %s' % (vq(aV0 + 24 * b + 4 * i, 4, 'a'), vKV, sq(V_SRD), sOFF, (i // 3) * 3072 + (i % 3) * 128, kvflags))
    def issue_ring():
        for b in range(NB):
            issueK(b); issueV(b); A('s_add_u32 %s, %s, %d' % (sOFF, sOFF, STEP))
    def tags():
        A('s_waitcnt lgkmcnt(0)\ns_add_u32 s%d, s%d, 0x9e3779b9' % (sT[0], sT[0]))
        for i in range(1, 4): A('s_lshr_b32 s%d, s%d, %d' % (sT[i], sT[0], 8 * i))
    def stageM(younger):
        lab[0] += 1; n = lab[0]
        A('s_cmp_ge_u32 s2, 240\ns_cbranch_scc1 L_noM%d' % n)
        A('s_waitcnt vmcnt(%d)' % min(63, younger + 5))
        for t in range(5): A('v_lshlrev_b32 v%d, 16, v%d' % (vCs + t, vCs + t))
        for t in range(5): A('v_mul_f32 %s, 0x%x, v%d' % (T(t), LOG2E | 0x80000000, vCs + t))
        for t in range(5): A('v_exp_f32 %s, %s' % (T(t), T(t)))
        for t in range(5): A('v_add_f32 %s, 1.0, %s' % (T(t), T(t)))
        for t in range(5): A('v_rcp_f32 %s, %s' % (T(t), T(t)))
        for t in range(5): A('v_mul_f32 v%d, v%d, %s' % (vCs + t, vCs + t, T(t)))
        for t in range(5): A('v_cvt_pk_bf16_f32 v%d, v%d, v%d' % (vCs + t, vCs + t, vCs + t))
        A('s_waitcnt vmcnt(%d)' % younger)
        for t in range(5): selmfma(vACC, vCs + t, vq(aM + 4 * t, 4, 'a'), t & 1, t == 0)
        A('v_lshlrev_b32 %s, 4, v0\ns_lshl_b32 %s, %s, 10\nv_add_u32 %s, %s, %s' % (T(0), sA, sWV, T(0), sA, T(0)))
        A('ds_write_b128 %s, %s offset:%d\ns_waitcnt lgkmcnt(0)\ns_barrier' % (T(0), vq(vACC), L_RED))
        return n
    A('s_cmp_eq_u32 %s, 3\ns_cbranch_scc1 L_ctrl' % sWV)
    aWQ = aW0 + 20
    srd(A_SRD, pWQ, 7864320)
    A('s_mul_i32 %s, %s, %d\ns_mul_i32 %s, %s, 384\ns_add_u32 %s, %s, %s\ns_lshl_b32 %s, %s, 7\ns_add_u32 %s, %s, %s' % (sA, sS, 80 * 12288, sB, sH, sA, sA, sB, sB, sWV, sA, sA, sB))
    A('v_mul_u32_u24 %s, 12288, v%d\nv_lshl_add_u32 %s, v%d, 4, %s' % (T(2), vG, T(2), vC, T(2)))
    for t in range(10):
        A('buffer_load_dwordx4 %s, %s, %s, %s offen %s' % (vq(aWQ + 4 * t, 4, 'a'), T(2), sq(A_SRD), sA, wflags))
        if t < 9: A('s_add_u32 %s, %s, 98304' % (sA, sA))
    issue_ring()
    tags()
    n = stageM(10 + 12 * NB)
    A('L_noM%d:' % n)
    stamp(1)
    A('s_barrier')
    stamp(2)
    A('v_lshlrev_b32 %s, 2, v%d' % (T(0), vG))
    for t in range(10): A('ds_read_b32 %s, %s offset:%d' % (T(1 + t), T(0), L_H + 32 * t))
    A('s_waitcnt vmcnt(%d) lgkmcnt(0)' % (12 * NB))
    for t in range(10): selmfma(vACC, vT + 1 + t, vq(aWQ + 4 * t, 4, 'a'), t & 1, t == 0)
    A('v_lshrrev_b32 %s, 4, v0\nv_lshl_add_u32 %s, v%d, 1, %s\nv_lshlrev_b32 %s, 4, %s' % (T(0), T(0), vC, T(0), T(0), T(0)))
    A('s_lshl_b32 %s, s2, 10\ns_lshl_b32 %s, %s, 8\ns_add_u32 %s, %s, %s\ns_add_u32 %s, %s, %d' % (sA, sB, sWV, sA, sA, sB, sA, sA, WS_Q))
    pair_sum(vACC, vT + 4)
    enc(vACC)
    setexec(0x00ff00ff)
    A('buffer_store_dwordx4 %s, %s, %s, %s offen sc1' % (vq(vACC), T(0), sq(WS_SRD), sA))
    setexec(-1)
    A('s_branch L_qwait')
    A('L_ctrl:')
    srd(A_SRD, pX, 1280)
    vX0, vX1, vXs = vT + 16, vT + 20, vT + 24
    vBIG = 224
    A('v_lshlrev_b32 %s, 4, v0' % T(3))
    A('buffer_load_dwordx4 %s, %s, %s, 0 offen' % (vq(vX0), T(3), sq(A_SRD)))
    A('buffer_load_dwordx4 %s, %s, %s, 0 offen offset:1024' % (vq(vX1), T(3), sq(A_SRD)))
    A('v_lshlrev_b32 %s, 3, v0\ns_mul_i32 %s, %s, 160' % (T(4), sA, sS))
    A('buffer_load_dwordx2 %s, %s, %s, %s offen' % (vq(vXs, 2), T(4), sq(A_SRD), sA))
    if w3pre: issue_ring()
    tags()
    n = stageM(3 + (12 * NB if w3pre else 0))
    l1addr(vT + 0, 0, vT + 1)
    A('v_lshlrev_b32 %s, 4, v0' % T(3))
    red16(vT + 4, L_RED, vBIG, vT + 0)
    enc(vT + 4)
    A('s_and_b32 %s, s2, 3\ns_mul_i32 %s, %s, 15360\ns_lshr_b32 %s, s2, 2\ns_lshl_b32 %s, %s, 8\ns_add_u32 %s, %s, %s\ns_add_u32 %s, %s, %d' % (sA, sA, sA, sB, sB, sB, sA, sA, sB, sA, sA, WS_M))
    setexec(0xffff)
    A('buffer_store_dwordx4 %s, %s, %s, %s offen sc1' % (vq(vT + 4), T(3), sq(WS_SRD), sA))
    setexec(-1)
    A('s_waitcnt vmcnt(%d)\ns_branch L_xok' % (1 + 12 * NB if w3pre else 1))
    A('L_noM%d:' % n)
    A('s_waitcnt vmcnt(%d)' % (12 * NB if w3pre else 0))
    A('L_xok:')
    stamp(1)
    vU = vBIG
    unpack4(vU, vX0); unpack4(vU + 4, vX0 + 2); unpack4(vU + 8, vX1); unpack4(vU + 12, vX1 + 2)
    A('v_add_f32 %s, v%d, v%d' % (T(8), vU, vU + 1))
    for i in range(2, 16): A('v_add_f32 %s, %s, v%d' % (T(8), T(8), vU + i))
    wave_sum(vT + 8, vT + 9)
    A('v_mul_f32 %s, 0x%x, %s' % (T(8), 0x3ACCCCCD, T(8)))
    for i in range(16): A('v_sub_f32 v%d, v%d, %s' % (vU + i, vU + i, T(8)))
    A('v_mul_f32 %s, v%d, v%d' % (T(10), vU, vU))
    for i in range(1, 8): A('v_fmac_f32 %s, v%d, v%d' % (T(10), vU + i, vU + i))
    setexec(0xffff)
    for i in range(8, 16): A('v_fmac_f32 %s, v%d, v%d' % (T(10), vU + i, vU + i))
    setexec(-1)
    wave_sum(vT + 10, vT + 9)
    def finish_stats(m, v):
        A('v_mul_f32 v%d, 0x%x, v%d' % (v, 0x3ACCCCCD, v))
        rnd1(m); rnd1(v)
        A('v_add_f32 v%d, 0x%x, v%d' % (v, 0x3727C5AC, v))
        rnd1(v)
        A('v_sqrt_f32 v%d, v%d' % (v, v))
        rnd1(v)
        A('v_rcp_f32 v%d, v%d' % (v, v))
    finish_stats(vT + 8, vT + 10)
    def normalize(x, m, r, t):
        for i in range(4): A('v_sub_f32 v%d, v%d, v%d' % (x + i, x + i, m))
        rnd4(x, t)
        for i in range(4): A('v_mul_f32 v%d, v%d, v%d' % (x + i, x + i, r))
        rnd4(x, t)
    vN = vT + 12
    unpack4(vN, vXs)
    normalize(vN, vT + 8, vT + 10, vT + 0)
    A('v_and_b32 %s, 31, v0\nv_lshrrev_b32 %s, 5, v0\nv_mul_u32_u24 %s, 2560, %s\nv_lshl_add_u32 %s, %s, 4, %s' % (T(2), T(3), T(3), T(3), T(2), T(2), T(3)))
    A('s_mul_i32 %s, %s, 320\ns_add_u32 %s, %s, %d' % (sA, sS, sA, sA, WS_M))
    A('s_add_u32 %s, %s, 15360\ns_add_u32 %s, %s, 15360\ns_add_u32 %s, %s, 15360' % (sB, sA, sC_, sB, sD, sC_))
    def iss():
        for i, s in enumerate((sA, sB, sC_, sD)):
            A('buffer_load_dwordx4 %s, %s, %s, %s offen sc1' % (vq(vBIG + 4 * i), T(2), sq(WS_SRD), s))
    poll(iss, [vBIG + 4 * i for i in range(4)], T(3), 0x000fffff000fffff)
    setexec(-1)
    vS_ = vT + 4
    sum_gran(vS_, [vBIG + 4 * i for i in range(4)])
    rnd4(vS_, vT + 0)
    vCa = vT + 16
    for i in range(4): A('v_mov_b32 v%d, v%d' % (vCa + i, vS_ + i))
    for i in range(4): A('v_permlane32_swap_b32 v%d, v%d' % (vS_ + i, vCa + i))
    def modulate(x, cc, ss, t):
        for i in range(4): A('v_mul_f32 v%d, v%d, v%d' % (x + i, x + i, cc + i))
        rnd4(x, t)
        for i in range(4): A('v_add_f32 v%d, v%d, v%d' % (x + i, x + i, ss + i))
        for i in range(4): A('v_cvt_pk_bf16_f32 v%d, v%d, v%d' % (x + i, x + i, x + i))
    for i in range(4): A('v_add_f32 v%d, 1.0, v%d' % (vCa + i, vCa + i))
    rnd4(vCa, vT + 0)
    modulate(vN, vCa, vS_, vT + 0)
    A('v_lshlrev_b32 %s, 4, v0' % T(3))
    setexec(0xfffff)
    A('ds_write_b128 %s, %s offset:%d' % (T(3), vq(vN), L_H))
    setexec(-1)
    A('s_waitcnt lgkmcnt(0)\ns_barrier')
    stamp(2)
    A('s_lshl_b32 %s, %s, 13\ns_add_u32 %s, %s, %d\ns_add_u32 %s, %s, 4096' % (sA, sH, sA, sA, WS_Q, sB, sA))
    def iss():
        for i in range(8):
            A('buffer_load_dwordx4 %s, %s, %s, %s offen offset:%d sc1' % (vq(vBIG + 4 * i), T(3), sq(WS_SRD), sA if i < 4 else sB, (i % 4) * 1024))
    poll(iss, [vBIG + 4 * i for i in range(8)], T(2), (1 << 48) - 1)
    sum_gran(vS_, [vBIG + 4 * i for i in range(8)])
    A('v_cvt_pk_bf16_f32 %s, v%d, v%d\nv_cvt_pk_bf16_f32 %s, v%d, v%d' % (T(0), vS_, vS_ + 1, T(1), vS_ + 2, vS_ + 3))
    A('v_lshlrev_b32 %s, 3, v0\nds_write_b64 %s, %s offset:%d' % (T(2), T(2), vq(vT, 2), L_Q))
    setexec(-1)
    if not w3pre: issue_ring()
    A('s_waitcnt lgkmcnt(0)')
    A('L_qwait:')
    A('s_barrier')
    A('v_lshlrev_b32 %s, 4, v%d' % (T(0), vC))
    for i in range(3): A('ds_read_b128 %s, %s offset:%d' % (vq(vQ + 4 * i), T(0), L_Q + 128 * i))
    for i in range(12): A('v_mov_b32 v%d, 0' % (vACC + i))
    A('v_mov_b32 v%d, 0\ns_mov_b32 %s, 0xff800000\ns_mov_b32 %s, 0xff800000' % (vLS, sM, sML))
    A('s_waitcnt lgkmcnt(0)')
    stamp(3)
    slow = []
    def tile(b, nK, nV, reissue):
        lab[0] += 1; n = lab[0]
        kb = vK0 + 24 * b
        s0, s1, s0b, s1b = vT, vT + 1, vT + 2, vT + 3
        A('s_waitcnt vmcnt(%d)' % nK)
        for i in range(3):
            for j in range(4):
                for gk in range(2):
                    d = (s0, s1)[gk] if (j & 1) == 0 else (s0b, s1b)[gk]
                    k = kb + 12 * gk + 4 * i + j
                    if i == 0 and j < 2: A('v_dot2_f32_bf16 v%d, v%d, v%d, 0' % (d, k, vQ + 4 * i + j))
                    else: A('v_dot2_f32_bf16 v%d, v%d, v%d, v%d' % (d, k, vQ + 4 * i + j, d))
        if reissue: issueK(b)
        A('v_add_f32 v%d, v%d, v%d\nv_add_f32 v%d, v%d, v%d' % (s0, s0, s0b, s1, s1, s1b))
        for pat in ('quad_perm:[1,0,3,2]', 'quad_perm:[2,3,0,1]', 'row_half_mirror'):
            A('v_add_f32_dpp v%d, v%d, v%d %s %s' % (s0, s0, s0, pat, DPP))
            A('v_add_f32_dpp v%d, v%d, v%d %s %s' % (s1, s1, s1, pat, DPP))
        A('v_cvt_pk_bf16_f32 v%d, v%d, v%d' % (s0b, s0, s1))
        A('v_lshlrev_b32 v%d, 16, v%d\nv_and_b32 v%d, 0xffff0000, v%d' % (s0, s0b, s1, s0b))
        A('v_mul_f32 v%d, 0x%x, v%d\nv_mul_f32 v%d, 0x%x, v%d' % (s0, SCALE, s0, s1, SCALE, s1))
        A('v_cvt_pk_bf16_f32 v%d, v%d, v%d' % (s0b, s0, s1))
        A('v_lshlrev_b32 v%d, 16, v%d\nv_and_b32 v%d, 0xffff0000, v%d' % (s0, s0b, s1, s0b))
        A('v_max_f32 v%d, v%d, v%d' % (s0b, s0, s1))
        A('v_cmp_lt_f32 vcc, %s, v%d' % (sM, s0b))
        A('s_cbranch_vccnz L_slow%d' % n)
        A('L_back%d:' % n)
        A('v_fma_f32 v%d, v%d, v%d, -%s\nv_fma_f32 v%d, v%d, v%d, -%s' % (s0, s0, vLG2, sML, s1, s1, vLG2, sML))
        A('v_exp_f32 v%d, v%d\nv_exp_f32 v%d, v%d' % (s0, s0, s1, s1))
        A('v_add_f32 v%d, v%d, v%d\nv_cvt_pk_bf16_f32 v%d, v%d, v%d' % (vLS, vLS, s0, s0, s0, s0))
        A('v_add_f32 v%d, v%d, v%d\nv_cvt_pk_bf16_f32 v%d, v%d, v%d' % (vLS, vLS, s1, s1, s1, s1))
        for r in range(4): A('v_and_b32 v%d, v%d, v%d' % (vA0 + r, vMK[r], s0))
        for r in range(4): A('v_and_b32 v%d, v%d, v%d' % (vA1 + r, vMK[r], s1))
        A('s_waitcnt vmcnt(%d)' % nV)
        for gk in range(2):
            for i in range(3):
                A('v_mfma_f32_16x16x32_bf16 %s, %s, %s, %s' % (vq(vACC + 4 * i), vq((vA0, vA1)[gk]), vq(aV0 + 24 * b + 12 * gk + 4 * i, 4, 'a'), vq(vACC + 4 * i)))
        if reissue:
            issueV(b); A('s_add_u32 %s, %s, %d' % (sOFF, sOFF, STEP))
        slow.append(n)
    assert 64 % NB == 0
    A('s_mov_b32 %s, %d' % (sCNT, 64 // NB - 1))
    A('L_loop:')
    for b in range(NB): tile(b, 12 * NB - 6, 12 * NB - 6, True)
    A('s_sub_u32 %s, %s, 1\ns_cmp_lg_u32 %s, 0\ns_cbranch_scc1 L_loop' % (sCNT, sCNT, sCNT))
    for b in range(NB): tile(b, 12 * (NB - b) - 6, 12 * (NB - b - 1), False)
    stamp(4)
    A('s_cmp_lt_u32 %s, 10\ns_cbranch_scc0 L_notWload' % sKP)
    srd(A_SRD, pWO, 7864320)
    A('s_lshl_b32 %s, %s, 2\ns_add_u32 %s, %s, %s\ns_mul_i32 %s, %s, %d\ns_lshl_b32 %s, %s, 7\ns_add_u32 %s, %s, %s' % (sA, sS, sA, sA, sWV, sA, sA, 192 * 1280, sB, sKP, sA, sA, sB))
    A('v_mul_u32_u24 %s, %d, v%d\nv_lshl_add_u32 %s, v%d, 4, %s' % (T(8), 24 * 1280, vG, T(8), vC, T(8)))
    for t in range(24):
        A('buffer_load_dwordx4 %s, %s, %s, %s offen offset:%d %s' % (vq(aW0 + 4 * t, 4, 'a'), T(8), sq(A_SRD), sA, (t % 4) * 1280, wflags))
        if t % 4 == 3 and t < 23: A('s_add_u32 %s, %s, 5120' % (sA, sA))
    A('s_branch L_wloaded')
    A('L_notWload:')
    A('s_cmp_lt_u32 %s, 16\ns_cbranch_scc0 L_wloaded' % sKP)
    sF = 's88'
    A('s_mul_i32 %s, %s, 6\ns_add_u32 %s, %s, %s\ns_sub_u32 %s, %s, 10' % (sF, sS, sF, sF, sKP, sF, sF))
    A('v_cmp_gt_u32 vcc, 4, v%d\nv_mov_b32 %s, s%d\nv_mov_b32 %s, s%d\nv_cndmask_b32 %s, %s, %s, vcc' % (vC, T(8), pU, T(9), pG, T(8), T(8), T(9)))
    A('v_mov_b32 %s, s%d\nv_mov_b32 %s, s%d\nv_cndmask_b32 %s, %s, %s, vcc' % (T(9), pU + 1, T(10), pG + 1, T(9), T(9), T(10)))
    A('s_mul_i32 %s, %s, %d\ns_lshl_b32 %s, %s, 6\ns_add_u32 %s, %s, %s' % (sA, sWV, 160 * 3072, sB, sF, sA, sA, sB))
    A('v_mul_u32_u24 %s, %d, v%d\nv_and_b32 %s, 3, v%d\nv_lshl_add_u32 %s, %s, 4, %s\nv_add_u32 %s, %s, %s\nv_mov_b32 %s, 0' % (T(10), 20 * 3072, vG, T(11), vC, T(10), T(11), T(10), T(10), sA, T(10), T(11)))
    A('v_lshl_add_u64 %s, %s, 0, %s' % (vq(vT + 8, 2), vq(vT + 10, 2), vq(vT + 8, 2)))
    A('s_mov_b32 %s, 6144\ns_mov_b32 %s, 0' % (sA, sB))
    for t in range(20):
        A('global_load_dwordx4 %s, %s, off offset:%d %s' % (vq(aW0 + 4 * t, 4, 'a'), vq(vT + 8, 2), (t % 2) * 3072, wflags))
        if t % 2 == 1 and t < 19: A('v_lshl_add_u64 %s, %s, 0, s[76:77]' % (vq(vT + 8, 2), vq(vT + 8, 2)))
    srd(A_SRD, pDN, 1966080)
    A('s_mul_i32 %s, %s, %d\ns_lshl_b32 %s, %s, 7\ns_add_u32 %s, %s, %s' % (sA, sF, 32 * 1280, sB, sWV, sA, sA, sB))
    A('v_mul_u32_u24 %s, 5120, v%d\nv_lshl_add_u32 %s, v%d, 4, %s' % (T(8), vG, T(8), vC, T(8)))
    for cbk in range(3):
        if cbk == 2: A('s_cmp_ge_u32 %s, 2\ns_cbranch_scc1 L_wloaded' % sWV)
        for t in range(4):
            A('buffer_load_dwordx4 %s, %s, %s, %s offen offset:%d %s' % (vq(aW0 + 80 + 16 * cbk + 4 * t, 4, 'a'), T(8), sq(A_SRD), sA, t * 1280, wflags))
        if cbk < 2: A('s_add_u32 %s, %s, 512' % (sA, sA))
    A('L_wloaded:')
    A('v_add_f32_dpp v%d, v%d, v%d row_ror:8 %s' % (vLS, vLS, vLS, DPP))
    rows_op('v_add_f32', vLS, vT + 0)
    A('v_mov_b32 %s, %s\nv_mov_b32 %s, v%d' % (T(0), sM, T(1), vLS))
    A('s_mul_i32 %s, %s, 3072\nv_lshl_add_u32 %s, v0, 4, %s\ns_lshl_b32 %s, %s, 3\nv_mov_b32 %s, %s' % (sA, sWV, T(2), sA, sB, sWV, T(3), sB))
    for i in range(3): A('ds_write_b128 %s, %s offset:%d' % (T(2), vq(vACC + 4 * i), L_RED + 1024 * i))
    A('ds_write_b64 %s, %s offset:%d' % (T(3), vq(vT, 2), L_ML))
    A('s_waitcnt lgkmcnt(0)\ns_barrier')
    A('s_cmp_lg_u32 %s, 0\ns_cbranch_scc1 L_opub' % sWV)
    vML = vT + 4
    A('v_mov_b32 %s, 0' % T(0))
    A('ds_read_b128 %s, %s offset:%d\nds_read_b128 %s, %s offset:%d' % (vq(vML), T(0), L_ML, vq(vML + 4), T(0), L_ML + 16))
    l1addr(vT + 1, 0, vT + 2)
    A('v_lshrrev_b32 %s, 4, v0\nv_min_u32 %s, 2, %s\nv_lshl_add_u32 %s, %s, 10, %s' % (T(2), T(2), T(2), T(1), T(2), T(1)))
    G8 = [vK0 + 4 * i for i in range(8)]
    for w in range(4):
        A('ds_read_b128 %s, %s offset:%d' % (vq(G8[2 * w]), T(1), L_RED + w * 3072))
        A('ds_read_b128 %s, %s offset:%d' % (vq(G8[2 * w + 1]), T(1), L_RED + w * 3072 + 640))
    A('s_waitcnt lgkmcnt(8)')
    vMx, vLx = vT + 12, vT + 13
    A('v_max3_f32 v%d, v%d, v%d, v%d\nv_max_f32 v%d, v%d, v%d' % (vMx, vML, vML + 2, vML + 4, vMx, vMx, vML + 6))
    A('v_mul_f32 %s, v%d, v%d' % (T(14), vLG2, vMx))
    for w in range(4): A('v_mul_f32 v%d, v%d, v%d' % (vML + 2 * w, vLG2, vML + 2 * w))
    for w in range(4): A('v_sub_f32 v%d, v%d, %s' % (vML + 2 * w, vML + 2 * w, T(14)))
    for w in range(4): A('v_exp_f32 v%d, v%d' % (vML + 2 * w, vML + 2 * w))
    A('v_mul_f32 v%d, v%d, v%d' % (vLx, vML, vML + 1))
    for w in range(1, 4): A('v_fmac_f32 v%d, v%d, v%d' % (vLx, vML + 2 * w, vML + 2 * w + 1))
    A('s_waitcnt lgkmcnt(0)')
    vO = vT + 16
    for w in range(4):
        for i in range(4): A('v_add_f32 v%d, v%d, v%d' % (G8[2 * w] + i, G8[2 * w] + i, G8[2 * w + 1] + i))
    for i in range(4): A('v_mul_f32 v%d, v%d, v%d' % (vO + i, G8[0] + i, vML))
    for w in range(1, 4):
        for i in range(4): A('v_fmac_f32 v%d, v%d, v%d' % (vO + i, G8[2 * w] + i, vML + 2 * w))
    A('v_cmp_eq_u32 vcc, 48, v0\nv_cndmask_b32 v%d, v%d, v%d, vcc\nv_cndmask_b32 v%d, v%d, v%d, vcc' % (vO, vO, vMx, vO + 1, vO + 1, vLx))
    enc(vO)
    A('v_lshlrev_b32 %s, 4, v0\ns_lshl_b32 %s, s2, 10\ns_add_u32 %s, %s, %d' % (T(0), sA, sA, sA, WS_O))
    setexec((1 << 49) - 1)
    A('buffer_store_dwordx4 %s, %s, %s, %s offen sc1' % (vq(vO), T(0), sq(WS_SRD), sA))
    setexec(-1)
    A('L_opub:')
    stamp(5)
    A('s_cmp_lt_u32 %s, 10\ns_cbranch_scc1 L_roleW' % sKP)
    A('s_cmp_lt_u32 %s, 16\ns_cbranch_scc1 L_roleF' % sKP)
    A('s_cmp_eq_u32 %s, 16\ns_cbranch_scc1 L_roleR' % sKP)
    A('s_cmp_eq_u32 %s, 17\ns_cbranch_scc0 L_fin\ns_cmp_lt_u32 %s, 2\ns_cbranch_scc1 L_roleR\ns_branch L_fin' % (sKP, sS))
    G9 = [vK0 + 4 * i for i in range(12)] if NB >= 2 else None
    assert NB >= 2
    A('L_roleW:')
    A('s_lshl_b32 %s, %s, 2\ns_add_u32 %s, %s, %s\ns_lshl_b32 %s, %s, 13\ns_add_u32 %s, %s, %d\ns_add_u32 %s, %s, 4096' % (sA, sS, sA, sA, sWV, sA, sA, sA, sA, WS_O, sB, sA))
    A('v_min_u32 %s, 47, v0\nv_lshlrev_b32 %s, 4, %s\nv_lshlrev_b32 %s, 10, v%d' % (T(0), T(0), T(0), T(1), vC))
    def iss():
        A('buffer_load_dwordx4 %s, %s, %s, %s offen offset:768 sc1' % (vq(G9[8]), T(1), sq(WS_SRD), sA))
        for i in range(8):
            A('buffer_load_dwordx4 %s, %s, %s, %s offen offset:%d sc1' % (vq(G9[i]), T(0), sq(WS_SRD), sA if i < 4 else sB, (i % 4) * 1024))
    poll(iss, G9[:9], T(2))
    stamp(6)
    m_, l_ = G9[8], G9[8] + 1
    A('v_max_f32_dpp %s, v%d, v%d quad_perm:[1,0,3,2] %s' % (T(2), m_, m_, DPP))
    A('v_max_f32_dpp %s, %s, %s quad_perm:[2,3,0,1] %s' % (T(2), T(2), T(2), DPP))
    A('v_max_f32_dpp %s, %s, %s row_half_mirror %s' % (T(2), T(2), T(2), DPP))
    A('v_mul_f32 v%d, v%d, v%d\nv_mul_f32 %s, v%d, %s\nv_sub_f32 v%d, v%d, %s\nv_exp_f32 v%d, v%d' % (m_, vLG2, m_, T(2), vLG2, T(2), m_, m_, T(2), m_, m_))
    A('v_mul_f32 v%d, v%d, v%d' % (l_, l_, m_))
    for pat in ('quad_perm:[1,0,3,2]', 'quad_perm:[2,3,0,1]', 'row_half_mirror'):
        A('v_add_f32_dpp v%d, v%d, v%d %s %s' % (l_, l_, l_, pat, DPP))
    A('v_rcp_f32 v%d, v%d\nv_mul_f32 v%d, v%d, v%d' % (l_, l_, m_, m_, l_))
    for i in range(8): A('v_readlane_b32 s%d, v%d, %d' % (sW[i], m_, i))
    for i in range(4): A('v_mul_f32 v%d, s%d, v%d' % (vO + i, sW[0], G9[0] + i))
    for s_ in range(1, 8):
        for i in range(4): A('v_fmac_f32 v%d, s%d, v%d' % (vO + i, sW[s_], G9[s_] + i))
    for i in range(4): A('v_cvt_pk_bf16_f32 v%d, v%d, v%d' % (vO + i, vO + i, vO + i))
    A('s_mul_i32 %s, %s, 768\nv_add_u32 %s, %s, %s' % (sA, sWV, T(0), sA, T(0)))
    A('ds_write_b128 %s, %s offset:%d' % (T(0), vq(vO), L_O))
    A('v_mul_u32_u24 %s, 96, v%d\nv_add_u32 %s, %s, %s\ns_waitcnt lgkmcnt(0)' % (T(1), vG, T(1), sA, T(1)))
    for q_ in range(6): A('ds_read_b128 %s, %s offset:%d' % (vq(vK0 + 4 * q_), T(1), L_O + 16 * q_))
    A('s_waitcnt lgkmcnt(0)')
    for t in range(24): selmfma(vACC, vK0 + t, vq(aW0 + 4 * t, 4, 'a'), t & 1, t == 0)
    A('v_lshlrev_b32 %s, 4, v0\ns_lshl_b32 %s, %s, 10\nv_add_u32 %s, %s, %s' % (T(0), sA, sWV, T(2), sA, T(0)))
    l1addr(vT + 1, 0, vT + 3)
    A('ds_write_b128 %s, %s offset:%d\ns_waitcnt lgkmcnt(0)\ns_barrier' % (T(2), vq(vACC), L_RED2))
    A('s_cmp_lg_u32 %s, 0\ns_cbranch_scc1 L_fin' % sWV)
    red16(vO, L_RED2, vK0, vT + 1)
    enc(vO)
    A('s_mul_i32 %s, %s, 2560\ns_lshl_b32 %s, %s, 8\ns_add_u32 %s, %s, %s\ns_add_u32 %s, %s, %d' % (sA, sS, sB, sKP, sA, sA, sB, sA, sA, WS_Y))
    setexec(0xffff)
    A('buffer_store_dwordx4 %s, %s, %s, %s offen sc1' % (vq(vO), T(0), sq(WS_SRD), sA))
    setexec(-1)
    stamp(7)
    A('s_branch L_fin')
    def gather_mod(dst, which, voff, soff_cols, mask, tmpregs):
        A('s_add_u32 %s, %s, %d' % (sA, soff_cols, WS_M + which * 2560))
        A('s_add_u32 %s, %s, 15360\ns_add_u32 %s, %s, 15360\ns_add_u32 %s, %s, 15360' % (sB, sA, sC_, sB, sD, sC_))
        def iss():
            for i, s in enumerate((sA, sB, sC_, sD)):
                A('buffer_load_dwordx4 %s, %s, %s, %s offen sc1' % (vq(tmpregs[i]), voff, sq(WS_SRD), s))
        poll(iss, tmpregs[:4], T(2), mask)
        sum_gran(dst, tmpregs[:4])
        rnd4(dst, vT + 2)
    def gather_y(dst, voff, soff_cols, mask, tmpregs):
        A('s_add_u32 %s, %s, %d\ns_add_u32 %s, %s, 5120\ns_add_u32 %s, %s, 5120\ns_add_u32 %s, %s, 5120' % (sA, soff_cols, WS_Y, sB, sA, sC_, sB, sD, sC_))
        def iss():
            for i in range(8):
                A('buffer_load_dwordx4 %s, %s, %s, %s offen offset:%d sc1' % (vq(tmpregs[i]), voff, sq(WS_SRD), (sA, sB, sC_, sD)[i // 2], (i % 2) * 2560))
        poll(iss, tmpregs[:8], T(2), mask)
        stamp(6)
        sum_gran(dst, tmpregs[:8])
        rnd4(dst, vT + 2)
    def resid(x, g_, a_, t):
        for i in range(4): A('v_mul_f32 v%d, v%d, v%d' % (a_ + i, a_ + i, g_ + i))
        rnd4(a_, t)
        for i in range(4): A('v_add_f32 v%d, v%d, v%d' % (x + i, x + i, a_ + i))
    vGA, vSB, vCB, vXX, vAA = vT + 8, vT + 12, vT + 16, vT + 20, vT + 24
    sCOL = 's89'
    A('L_roleF:')
    M40 = (1 << 40) - 1
    srd(B_SRD, pX, 1280)
    A('s_mul_i32 %s, %s, 640\ns_mul_i32 %s, %s, 320' % (sCOL, sWV, sA, sWV))
    A('v_lshlrev_b32 %s, 4, v0\nv_lshlrev_b32 %s, 3, v0' % (T(0), T(1)))
    A('buffer_load_dwordx2 %s, %s, %s, %s offen' % (vq(vAA, 2), T(1), sq(B_SRD), sA))
    for i in range(4): A('v_mov_b32 v%d, 0' % (vXX + i))
    gather_mod(vGA, 2, T(0), sCOL, M40, G9)
    gather_mod(vSB, 3, T(0), sCOL, M40, G9)
    gather_mod(vCB, 4, T(0), sCOL, M40, G9)
    unpack4(vXX, vAA)
    for i in range(4): A('v_add_f32 v%d, 1.0, v%d' % (vCB + i, vCB + i))
    rnd4(vCB, vT + 2)
    gather_y(vAA, T(0), sCOL, M40, G9)
    resid(vXX, vGA, vAA, vT + 2)
    rnd4(vXX, vT + 2)
    setexec(-1)
    A('v_add_f32 %s, v%d, v%d\nv_add_f32 %s, v%d, v%d\nv_add_f32 %s, %s, %s' % (T(4), vXX, vXX + 1, T(5), vXX + 2, vXX + 3, T(4), T(4), T(5)))
    wave_sum(vT + 4, vT + 5)
    A('v_mul_f32 %s, 0x%x, %s\nv_mov_b32 %s, 0' % (T(4), 0x3BCCCCCD, T(4), T(5)))
    setexec(M40)
    for i in range(4): A('v_sub_f32 v%d, v%d, %s' % (vAA + i, vXX + i, T(4)))
    for i in range(4): A('v_fmac_f32 %s, v%d, v%d' % (T(5), vAA + i, vAA + i))
    setexec(-1)
    wave_sum(vT + 5, vT + 6)
    A('s_lshl_b32 %s, %s, 3\nv_mov_b32 %s, %s\nds_write_b64 %s, %s offset:%d' % (sA, sWV, T(6), sA, T(6), vq(vT + 4, 2), L_ST))
    A('v_mov_b32 %s, 0\ns_waitcnt lgkmcnt(0)\ns_barrier' % T(6))
    A('ds_read_b128 %s, %s offset:%d\nds_read_b128 %s, %s offset:%d\ns_waitcnt lgkmcnt(0)' % (vq(G9[0]), T(6), L_ST, vq(G9[1]), T(6), L_ST + 16))
    mu = [G9[0], G9[0] + 2, G9[1], G9[1] + 2]
    A('v_add_f32 %s, v%d, v%d\nv_add_f32 %s, v%d, v%d\nv_add_f32 %s, %s, %s\nv_mul_f32 %s, 0x3e800000, %s' % (T(4), mu[0], mu[1], T(5), mu[2], mu[3], T(4), T(4), T(5), T(4), T(4)))
    for w in range(4): A('v_sub_f32 v%d, v%d, %s' % (mu[w], mu[w], T(4)))
    A('v_mul_f32 %s, v%d, v%d' % (T(5), mu[0], mu[0]))
    for w in range(1, 4): A('v_fmac_f32 %s, v%d, v%d' % (T(5), mu[w], mu[w]))
    A('v_mul_f32 %s, 0x43200000, %s' % (T(5), T(5)))
    for w in range(4): A('v_add_f32 %s, %s, v%d' % (T(5), T(5), mu[w] + 1))
    finish_stats(vT + 4, vT + 5)
    normalize(vXX, vT + 4, vT + 5, vT + 2)
    modulate(vXX, vCB, vSB, vT + 2)
    A('v_add_u32 %s, %s, %s' % (T(1), sCOL, T(0)))
    setexec(M40)
    A('ds_write_b128 %s, %s offset:%d' % (T(1), vq(vXX), L_X))
    setexec(-1)
    A('v_mul_u32_u24 %s, 80, v%d\nv_add_u32 %s, %s, %s\ns_waitcnt lgkmcnt(0)' % (T(1), vG, T(1), sCOL, T(1)))
    for q_ in range(5): A('ds_read_b128 %s, %s offset:%d' % (vq(vK0 + 4 * q_), T(1), L_X + 16 * q_))
    A('s_waitcnt lgkmcnt(0)')
    for t in range(20): selmfma(vACC, vK0 + t, vq(aW0 + 4 * t, 4, 'a'), t & 1, t == 0)
    A('s_lshl_b32 %s, %s, 10\nv_add_u32 %s, %s, %s' % (sA, sWV, T(2), sA, T(0)))
    l1addr(vT + 1, vG, vT + 3)
    A('ds_write_b128 %s, %s offset:%d\ns_waitcnt lgkmcnt(0)\ns_barrier' % (T(2), vq(vACC), L_RED2))
    vGt, vUp = vT + 8, vT + 12
    red16(vGt, L_RED2, vK0, vT + 1)
    red16(vUp, L_RED2 + 64, vK0, vT + 1)
    rnd4(vGt, vT + 2); rnd4(vUp, vT + 2)
    vE = vT + 16
    for i in range(4): A('v_mul_f32 v%d, v%d, v%d' % (vE + i, vGt + i, vGt + i))
    A('v_mov_b32 %s, 0x3d372713' % T(2))
    for i in range(4): A('v_fma_f32 v%d, v%d, %s, 1.0' % (vE + i, vE + i, T(2)))
    for i in range(4): A('v_mul_f32 v%d, v%d, v%d' % (vE + i, vE + i, vGt + i))
    for i in range(4): A('v_mul_f32 v%d, 0x%x, v%d' % (vE + i, 0xC0135761, vE + i))
    for i in range(4): A('v_exp_f32 v%d, v%d' % (vE + i, vE + i))
    for i in range(4): A('v_add_f32 v%d, 1.0, v%d' % (vE + i, vE + i))
    for i in range(4): A('v_rcp_f32 v%d, v%d' % (vE + i, vE + i))
    for i in range(4): A('v_mul_f32 v%d, v%d, v%d' % (vGt + i, vGt + i, vE + i))
    rnd4(vGt, vT + 2)
    for i in range(4): A('v_mul_f32 v%d, v%d, v%d' % (vGt + i, vGt + i, vUp + i))
    for i in range(4): A('v_cvt_pk_bf16_f32 v%d, v%d, v%d' % (vGt + i, vGt + i, vGt + i))
    vAS = vK0
    for t in range(4):
        for r in range(4): A('v_and_b32 v%d, v%d, v%d' % (vAS + 4 * t + r, vMK[r], vGt + t))
    A('v_lshrrev_b32 %s, 4, v0\nv_lshl_add_u32 %s, v%d, 1, %s\nv_lshlrev_b32 %s, 4, %s' % (T(0), T(0), vC, T(0), T(0), T(0)))
    A('s_mul_i32 %s, %s, 2560\ns_lshl_b32 %s, %s, 8\ns_add_u32 %s, %s, %s\ns_add_u32 %s, %s, %d' % (sA, sF, sB, sWV, sA, sA, sB, sA, sA, WS_D))
    for t in range(4):
        for cbk in range(2):
            A('v_mfma_f32_16x16x32_bf16 %s, %s, %s, %s' % (vq(vACC + 4 * cbk), vq(vAS + 4 * t), vq(aW0 + 80 + 16 * cbk + 4 * t, 4, 'a'), '0' if t == 0 else vq(vACC + 4 * cbk)))
    A('s_cmp_ge_u32 %s, 2\ns_cbranch_scc1 L_d2' % sWV)
    for t in range(4):
        A('v_mfma_f32_16x16x32_bf16 %s, %s, %s, %s' % (vq(vACC + 8), vq(vAS + 4 * t), vq(aW0 + 80 + 32 + 4 * t, 4, 'a'), '0' if t == 0 else vq(vACC + 8)))
    A('L_d2:')
    for cbk in range(2):
        pair_sum(vACC + 4 * cbk, vT + 4); enc(vACC + 4 * cbk)
        setexec(0x00ff00ff)
        A('buffer_store_dwordx4 %s, %s, %s, %s offen offset:%d sc1' % (vq(vACC + 4 * cbk), T(0), sq(WS_SRD), sA, 1024 * cbk))
        setexec(-1)
    A('s_cmp_ge_u32 %s, 2\ns_cbranch_scc1 L_d3' % sWV)
    pair_sum(vACC + 8, vT + 4); enc(vACC + 8)
    setexec(0x00ff00ff)
    A('buffer_store_dwordx4 %s, %s, %s, %s offen offset:2048 sc1' % (vq(vACC + 8), T(0), sq(WS_SRD), sA))
    setexec(-1)
    A('L_d3:')
    stamp(7)
    A('s_branch L_fin')
    A('L_roleR:')
    sRW = 's88'
    A('s_sub_u32 %s, %s, 16\ns_lshl_b32 %s, %s, 3\ns_add_u32 %s, %s, %s\ns_lshl_b32 %s, %s, 2\ns_add_u32 %s, %s, %s' % (sRW, sKP, sRW, sRW, sRW, sRW, sS, sRW, sRW, sRW, sRW, sWV))
    srd(B_SRD, pX, 1280)
    A('s_lshl_b32 %s, %s, 6\ns_lshl_b32 %s, %s, 5' % (sCOL, sRW, sA, sRW))
    A('v_and_b32 %s, 3, v0\nv_lshlrev_b32 %s, 4, %s\nv_lshlrev_b32 %s, 3, %s' % (T(1), T(0), T(1), T(1), T(1)))
    A('buffer_load_dwordx2 %s, %s, %s, %s offen' % (vq(vAA, 2), T(1), sq(B_SRD), sA))
    gather_mod(vGA, 2, T(0), sCOL, None, G9)
    gather_mod(vSB, 5, T(0), sCOL, None, G9)
    unpack4(vXX, vAA)
    gather_y(vAA, T(0), sCOL, None, G9)
    resid(vXX, vGA, vAA, vT + 2)
    rnd4(vXX, vT + 2)
    A('v_lshrrev_b32 %s, 2, v0\nv_mul_u32_u24 %s, 2560, %s\nv_add_u32 %s, %s, %s' % (T(3), T(3), T(3), T(3), T(3), T(0)))
    A('s_add_u32 %s, %s, %d\ns_add_u32 %s, %s, 40960\ns_add_u32 %s, %s, 40960' % (sA, sCOL, WS_D, sB, sA, sC_, sB))
    def iss():
        for i, s in enumerate((sA, sB, sC_)):
            A('buffer_load_dwordx4 %s, %s, %s, %s offen sc1' % (vq(G9[i]), T(3), sq(WS_SRD), s))
    poll(iss, G9[:3], T(2))
    stamp(7)
    sum_gran(vAA, G9[:3])
    for pat in ('row_ror:4', 'row_ror:8'):
        for i in range(4): A('v_add_f32_dpp v%d, v%d, v%d %s %s' % (vAA + i, vAA + i, vAA + i, pat, DPP))
    for sw in ('v_permlane16_swap_b32', 'v_permlane32_swap_b32'):
        for i in range(4): A('v_mov_b32 v%d, v%d' % (vCB + i, vAA + i))
        for i in range(4): A('%s v%d, v%d' % (sw, vAA + i, vCB + i))
        for i in range(4): A('v_add_f32 v%d, v%d, v%d' % (vAA + i, vAA + i, vCB + i))
    rnd4(vAA, vT + 2)
    resid(vXX, vSB, vAA, vT + 2)
    A('v_cvt_pk_bf16_f32 %s, v%d, v%d\nv_cvt_pk_bf16_f32 %s, v%d, v%d' % (T(4), vXX, vXX + 1, T(5), vXX + 2, vXX + 3))
    srd(A_SRD, pOUT, 1280)
    A('s_lshl_b32 %s, %s, 5' % (sA, sRW))
    setexec(0xf)
    A('buffer_store_dwordx2 %s, %s, %s, %s offen' % (vq(vT + 4, 2), T(1), sq(A_SRD), sA))
    A('s_cmp_lg_u32 %s, 0\ns_cbranch_scc1 L_noepoch' % sRW)
    A('v_mov_b32 %s, s%d\nv_mov_b32 %s, 0' % (T(6), sT[0], T(7)))
    setexec(1)
    A('buffer_store_dword %s, %s, %s, 0 offen offset:%d sc1' % (T(6), T(7), sq(WS_SRD), WS_EPOCH))
    A('L_noepoch:')
    setexec(-1)
    A('L_fin:')
    if diag:
        stamp(8)
        A('s_getreg_b32 %s, hwreg(HW_REG_XCC_ID)\nv_writelane_b32 v%d, %s, 15' % (sA, vSTAMP, sA))
        A('s_lshl_b32 %s, s2, 2\ns_add_u32 %s, %s, %s\ns_lshl_b32 %s, %s, 6\ns_add_u32 %s, %s, %d' % (sA, sA, sA, sWV, sA, sA, sA, sA, WS_STAMP))
        A('v_lshlrev_b32 %s, 2, v0' % T(0))
        setexec(0xffff)
        A('buffer_store_dword v%d, %s, %s, %s offen' % (vSTAMP, T(0), sq(WS_SRD), sA))
    A('s_waitcnt vmcnt(0)')
    A('L_done:\ns_endpgm')
    for n in slow:
        s0b, t1, t2 = vT + 2, vT + 3, vT + 4
        A('L_slow%d:' % n)
        A('v_max_f32_dpp v%d, v%d, v%d row_ror:8 %s' % (s0b, s0b, s0b, DPP))
        rows_op('v_max_f32', s0b, t1)
        A('v_mul_f32 v%d, v%d, v%d' % (t1, vLG2, s0b))
        A('v_sub_f32 v%d, %s, v%d\nv_exp_f32 v%d, v%d' % (t2, sML, t1, t2, t2))
        A('v_readfirstlane_b32 %s, v%d\nv_readfirstlane_b32 %s, v%d' % (sM, s0b, sML, t1))
        A('v_mul_f32 v%d, v%d, v%d' % (vLS, vLS, t2))
        for i in range(12): A('v_mul_f32 v%d, v%d, v%d' % (vACC + i, vACC + i, t2))
        A('s_branch L_back%d' % n)
    A('''.section .rodata,"a"
.p2align 6
.amdhsa_kernel %s_kernel
.amdhsa_next_free_vgpr 512
.amdhsa_next_free_sgpr 96
.amdhsa_accum_offset 256
.amdhsa_group_segment_fixed_size 0
.amdhsa_kernarg_size 112
.amdhsa_user_sgpr_count 2
.amdhsa_user_sgpr_kernarg_segment_ptr 1
.amdhsa_system_sgpr_workgroup_id_x 1
.amdhsa_float_denorm_mode_32 3
.end_amdhsa_kernel''' % NAME)
    return HEADER + A.text()

if __name__ == '__main__':
    import json
    out = sys.argv[1] if len(sys.argv) > 1 else 'cdna_kernels/%s.s' % NAME
    kw = json.loads(sys.argv[2]) if len(sys.argv) > 2 else {}
    open(out, 'w').write(gen(**kw))
```

```python
import sys
sys.path.insert(0, 'gen')
from asmlib import Asm
NAME = 'adaLN_cond__mha_block_cached__glu_gated_geglu__decode'

HEADER = open('cdna_kernels/%s.s.ref' % NAME).read().split('; Override launch')[0]

WS_EPOCH = 0
WS_M = 0x1000
WS_Q = 0x20000
WS_O = 0x60000
WS_Y = 0xA0000
WS_D = 0xB0000
WS_STAMP = 0x100000
WS_SIZE = 0x200000
L_RED = 0
L_ML = 12288
L_H = 12352
L_Q = 12800
L_O = 13312
L_X = 16384
L_ST = 19456
L_RED2 = 20480
LDS_BYTES = 32768
LOG2E = 0x3FB8AA3B
SCALE = 0x3D93CD3A

def gen(NB=2, kvflags='nt', wflags='nt', diag=False, order='inter', w3pre=0, spin=1 << 21, pad_to=0, pad_q=0):
    A = Asm()
    sWV = 's3'
    pX, pK, pV, pWQ, pWO, pG, pU = 16, 18, 20, 22, 24, 28, 30
    pDN, pC, pWM, pOUT, pDBG, pWS = 32, 34, 36, 38, 40, 42
    K_SRD, V_SRD, WS_SRD, A_SRD, B_SRD = 44, 48, 52, 56, 60
    sT = [64, 65, 66, 67]
    sH, sS, sKP = 's68', 's69', 's70'
    sM, sML = 's71', 's72'
    sOFF, sCNT, sSPIN = 's73', 's74', 's75'
    sA, sB, sC_, sD = 's76', 's77', 's78', 's79'
    sW = list(range(80, 88))
    sTS = 90
    def sp(i): return 's[%d:%d]' % (i, i + 1)
    def sq(i): return 's[%d:%d]' % (i, i + 3)
    def vq(i, n=4, k='v'): return '%s[%d:%d]' % (k, i, i + n - 1)
    vL, vG, vC, vKV = 0, 1, 2, 3
    vMK = [4, 5, 6, 7]
    vFF, vLG2, vSTAMP, vLS = 8, 9, 10, 11
    vQ = 12
    vACC = 24
    vA0, vA1 = 36, 40
    vT = 44
    vK0 = 96
    assert vK0 + 24 * NB <= 256
    aV0 = 0
    aW0 = 24 * NB
    assert aW0 + 128 <= 256
    T = lambda i: 'v%d' % (vT + i)
    stampn = [0]
    def stamp(idx):
        if diag:
            A('s_memrealtime %s\ns_waitcnt lgkmcnt(0)\nv_writelane_b32 v%d, s%d, %d' % (sp(sTS), vSTAMP, sTS, idx))
    def srd(r, p, nbytes):
        A('s_mov_b32 s%d, s%d\ns_mov_b32 s%d, s%d\ns_mov_b32 s%d, %d\ns_mov_b32 s%d, 0x20000' % (r, p, r + 1, p + 1, r + 2, nbytes, r + 3))
    def enc(r):
        for i in range(4): A('v_bfi_b32 v%d, v%d, s%d, v%d' % (r + i, vFF, sT[i], r + i))
    def chk(acc, r, first):
        for i in range(4):
            if first and i == 0: A('v_xor_b32 %s, s%d, v%d' % (acc, sT[0], r))
            else: A('v_bitop3_b32 %s, v%d, s%d, %s bitop3:0xbe' % (acc, r + i, sT[i], acc))
    lab = [0]
    def poll(issue, regs, acc, execmask=None):
        lab[0] += 1; n = lab[0]
        if execmask is not None: setexec(execmask)
        A('s_mov_b32 %s, 0' % sSPIN)
        A('L_poll%d:' % n)
        issue()
        A('s_add_u32 %s, %s, 1\ns_cmp_gt_u32 %s, %d\ns_cbranch_scc1 L_done' % (sSPIN, sSPIN, sSPIN, spin))
        A('s_waitcnt vmcnt(0)')
        for i, r in enumerate(regs): chk(acc, r, i == 0)
        A('v_and_b32 %s, v%d, %s' % (acc, vFF, acc))
        A('v_cmp_ne_u32 vcc, 0, %s' % acc)
        A('s_cbranch_vccnz L_poll%d' % n)
        for r in regs:
            for i in range(4): A('v_and_b32 v%d, 0xffffff00, v%d' % (r + i, r + i))
    def setexec(m):
        if m == -1: A('s_mov_b64 exec, -1')
        else: A('s_mov_b32 exec_lo, 0x%x\ns_mov_b32 exec_hi, 0x%x' % (m & 0xffffffff, m >> 32))
    def sum_gran(dst, regs):
        for i in range(4):
            A('v_add_f32 v%d, v%d, v%d' % (dst + i, regs[0] + i, regs[1] + i))
        for r in regs[2:]:
            for i in range(4): A('v_add_f32 v%d, v%d, v%d' % (dst + i, dst + i, r + i))
    def rnd4(r, t):
        A('v_cvt_pk_bf16_f32 v%d, v%d, v%d\nv_cvt_pk_bf16_f32 v%d, v%d, v%d' % (t, r, r + 1, t + 1, r + 2, r + 3))
        A('v_lshlrev_b32 v%d, 16, v%d\nv_and_b32 v%d, 0xffff0000, v%d' % (r, t, r + 1, t))
        A('v_lshlrev_b32 v%d, 16, v%d\nv_and_b32 v%d, 0xffff0000, v%d' % (r + 2, t + 1, r + 3, t + 1))
    def rnd1(r):
        A('v_cvt_pk_bf16_f32 v%d, v%d, v%d\nv_lshlrev_b32 v%d, 16, v%d' % (r, r, r, r, r))
    def unpack4(dst, src):
        A('v_lshlrev_b32 v%d, 16, v%d\nv_and_b32 v%d, 0xffff0000, v%d' % (dst, src, dst + 1, src))
        A('v_lshlrev_b32 v%d, 16, v%d\nv_and_b32 v%d, 0xffff0000, v%d' % (dst + 2, src + 1, dst + 3, src + 1))
    def selmfma(acc, sel, breg, alt, first=False):
        a = vA1 if alt else vA0
        for r in range(4): A('v_and_b32 v%d, v%d, v%d' % (a + r, vMK[r], sel))
        A('v_mfma_f32_16x16x32_bf16 %s, %s, %s, %s' % (vq(acc), vq(a), breg, '0' if first else vq(acc)))
    DPP = 'row_mask:0xf bank_mask:0xf'
    def wave_sum(r, t):
        A('v_add_f32_dpp v%d, v%d, v%d quad_perm:[1,0,3,2] %s' % (r, r, r, DPP))
        A('v_add_f32_dpp v%d, v%d, v%d quad_perm:[2,3,0,1] %s' % (r, r, r, DPP))
        A('v_add_f32_dpp v%d, v%d, v%d row_half_mirror %s' % (r, r, r, DPP))
        A('v_add_f32_dpp v%d, v%d, v%d row_ror:8 %s' % (r, r, r, DPP))
        rows_op('v_add_f32', r, t)
    def rows_op(op, r, t):
        A('v_mov_b32 v%d, v%d\nv_permlane16_swap_b32 v%d, v%d\n%s v%d, v%d, v%d' % (t, r, r, t, op, r, r, t))
        A('v_mov_b32 v%d, v%d\nv_permlane32_swap_b32 v%d, v%d\n%s v%d, v%d, v%d' % (t, r, r, t, op, r, r, t))
    def pair_sum(r, t):
        for i in range(4): A('v_mov_b32 v%d, v%d' % (t + i, r + i))
        for i in range(4): A('v_permlane32_swap_b32 v%d, v%d' % (r + i, t + i))
        for i in range(4): A('v_add_f32_dpp v%d, v%d, v%d row_ror:8 %s' % (r + i, t + i, r + i, DPP))
    def red16(dst, base, tmp, vaddr):
        regs = [tmp + 4 * i for i in range(8)]
        for w in range(4):
            A('ds_read_b128 %s, v%d offset:%d' % (vq(regs[2 * w]), vaddr, base + w * 1024))
            A('ds_read_b128 %s, v%d offset:%d' % (vq(regs[2 * w + 1]), vaddr, base + w * 1024 + 640))
        A('s_waitcnt lgkmcnt(0)')
        sum_gran(dst, regs)
    def l1addr(dst, j, t):
        A('v_and_b32 v%d, 1, v%d\nv_bfe_u32 v%d, v%d, 1, 3\nv_lshlrev_b32 v%d, 4, v%d\nv_lshl_add_u32 v%d, v%d, 8, v%d' % (dst, j, t, j, t, t, dst, dst, t))

    A('; @launch grid=(256,1,1) block=(256,1,1) lds=%d' % LDS_BYTES)
    A('.amdgcn_target "amdgcn-amd-amdhsa--gfx950"\n.text\n.globl %s_kernel\n.p2align 8\n.type %s_kernel,@function\n%s_kernel:' % (NAME, NAME, NAME))
    A('s_cmp_ge_u32 s2, 256\ns_cbranch_scc1 L_done')
    A('s_load_dwordx16 s[16:31], s[0:1], 0\ns_load_dwordx8 s[32:39], s[0:1], 64\ns_load_dwordx4 s[40:43], s[0:1], 96')
    A('v_lshrrev_b32 v1, 6, v0\nv_readfirstlane_b32 %s, v1\nv_and_b32 v0, 63, v0' % sWV)
    if diag: A('v_mov_b32 v%d, 0' % vSTAMP)
    A('v_lshrrev_b32 v%d, 3, v0\nv_and_b32 v%d, 7, v0' % (vG, vC))
    A('v_mul_u32_u24 v%d, 384, v%d\nv_lshl_add_u32 v%d, v%d, 4, v%d' % (vKV, vG, vKV, vC, vKV))
    A('v_and_b32 %s, 1, v%d\nv_lshlrev_b32 %s, 4, %s\nv_mov_b32 %s, 0xffff\nv_lshlrev_b32 %s, %s, %s' % (T(0), vC, T(0), T(0), T(1), T(1), T(0), T(1)))
    A('v_lshrrev_b32 %s, 1, v%d' % (T(0), vC))
    for r in range(4):
        A('v_cmp_eq_u32 vcc, %d, %s\nv_cndmask_b32 v%d, 0, %s, vcc' % (r, T(0), vMK[r], T(1)))
    A('v_mov_b32 v%d, 0xff\nv_mov_b32 v%d, 0x%x' % (vFF, vLG2, LOG2E))
    A('s_lshr_b32 %s, s2, 3\ns_and_b32 %s, s2, 7' % (sH, sS))
    A('s_lshl_b32 %s, %s, 2\ns_add_u32 %s, %s, %s\ns_and_b32 %s, %s, 31' % (sKP, sS, sKP, sKP, sH, sKP, sKP))
    A('s_waitcnt lgkmcnt(0)')
    A('s_load_dword s%d, %s, %d' % (sT[0], sp(pWS), WS_EPOCH))
    if pad_to or pad_q: A('s_memrealtime s[92:93]')
    def pad(us):
        lab[0] += 1
        A('L_pad%d:\ns_memrealtime s[90:91]\ns_waitcnt lgkmcnt(0)\ns_sub_u32 s90, s90, s92\ns_cmp_lt_u32 s90, %d\ns_cbranch_scc1 L_pad%d' % (lab[0], us * 100, lab[0]))
    stamp(0)
    A('s_mul_i32 %s, %s, 12582912' % (sA, sH))
    for (r, p) in ((K_SRD, pK), (V_SRD, pV)):
        A('s_add_u32 s%d, s%d, %s\ns_addc_u32 s%d, s%d, 0\ns_mov_b32 s%d, 12582912\ns_mov_b32 s%d, 0x20000' % (r, p, sA, r + 1, p + 1, r + 2, r + 3))
    srd(WS_SRD, pWS, WS_SIZE)
    aM = aW0; vCs = vT + 8
    A('s_cmp_ge_u32 s2, 240\ns_cbranch_scc1 L_noMload')
    srd(A_SRD, pC, 1280); srd(B_SRD, pWM, 4915200)
    A('s_and_b32 %s, s2, 3\ns_mul_i32 %s, %s, 160\ns_mul_i32 %s, %s, 40\ns_add_u32 %s, %s, %s' % (sA, sA, sA, sB, sWV, sA, sA, sB))
    A('s_lshl_b32 %s, %s, 1\nv_lshlrev_b32 %s, 1, v%d' % (sB, sA, T(0), vG))
    for t in range(5): A('buffer_load_ushort v%d, %s, %s, %s offen offset:%d' % (vCs + t, T(0), sq(A_SRD), sB, 16 * t))
    A('s_mul_i32 %s, %s, 7680\ns_lshr_b32 %s, s2, 2\ns_lshl_b32 %s, %s, 7\ns_add_u32 %s, %s, %s' % (sA, sA, sB, sB, sB, sA, sA, sB))
    A('v_mul_u32_u24 %s, 7680, v%d\nv_lshl_add_u32 %s, v%d, 4, %s' % (T(1), vG, T(1), vC, T(1)))
    for t in range(5):
        A('buffer_load_dwordx4 %s, %s, %s, %s offen %s' % (vq(aM + 4 * t, 4, 'a'), T(1), sq(B_SRD), sA, wflags))
        if t < 4: A('s_add_u32 %s, %s, 61440' % (sA, sA))
    A('L_noMload:')
    if order == 'inter':
        A('s_lshl_b32 %s, %s, 2\ns_add_u32 %s, %s, %s\ns_mul_i32 %s, %s, 6144' % (sOFF, sS, sOFF, sOFF, sWV, sOFF, sOFF)); STEP = 6144 * 32
    else:
        A('s_mul_i32 %s, %s, 6144\ns_mul_i32 %s, %s, %d\ns_add_u32 %s, %s, %s' % (sOFF, sWV, sA, sS, 256 * 6144, sOFF, sOFF, sA)); STEP = 6144 * 4
    def issueK(b):
        for i in range(6):
            A('buffer_load_dwordx4 %s, v%d, %s, %s offen offset:%d %s' % (vq(vK0 + 24 * b + 4 * i), vKV, sq(K_SRD), sOFF, (i // 3) * 3072 + (i % 3) * 128, kvflags))
    def issueV(b):
        for i in range(6):
            A('buffer_load_dwordx4 %s, v%d, %s, %s offen offset:%d %s' % (vq(aV0 + 24 * b + 4 * i, 4, 'a'), vKV, sq(V_SRD), sOFF, (i // 3) * 3072 + (i % 3) * 128, kvflags))
    def issue_ring():
        for b in range(NB):
            issueK(b); issueV(b); A('s_add_u32 %s, %s, %d' % (sOFF, sOFF, STEP))
    def tags():
        A('s_waitcnt lgkmcnt(0)\ns_add_u32 s%d, s%d, 0x9e3779b9' % (sT[0], sT[0]))
        for i in range(1, 4): A('s_lshr_b32 s%d, s%d, %d' % (sT[i], sT[0], 8 * i))
    def stageM(younger):
        lab[0] += 1; n = lab[0]
        A('s_cmp_ge_u32 s2, 240\ns_cbranch_scc1 L_noM%d' % n)
        A('s_waitcnt vmcnt(%d)' % min(63, younger + 5))
        for t in range(5): A('v_lshlrev_b32 v%d, 16, v%d' % (vCs + t, vCs + t))
        for t in range(5): A('v_mul_f32 %s, 0x%x, v%d' % (T(t), LOG2E | 0x80000000, vCs + t))
        for t in range(5): A('v_exp_f32 %s, %s' % (T(t), T(t)))
        for t in range(5): A('v_add_f32 %s, 1.0, %s' % (T(t), T(t)))
        for t in range(5): A('v_rcp_f32 %s, %s' % (T(t), T(t)))
        for t in range(5): A('v_mul_f32 v%d, v%d, %s' % (vCs + t, vCs + t, T(t)))
        for t in range(5): A('v_cvt_pk_bf16_f32 v%d, v%d, v%d' % (vCs + t, vCs + t, vCs + t))
        A('s_waitcnt vmcnt(%d)' % younger)
        for t in range(5): selmfma(vACC, vCs + t, vq(aM + 4 * t, 4, 'a'), t & 1, t == 0)
        A('v_lshlrev_b32 %s, 4, v0\ns_lshl_b32 %s, %s, 10\nv_add_u32 %s, %s, %s' % (T(0), sA, sWV, T(0), sA, T(0)))
        A('ds_write_b128 %s, %s offset:%d\ns_waitcnt lgkmcnt(0)\ns_barrier' % (T(0), vq(vACC), L_RED))
        return n
    A('s_cmp_eq_u32 %s, 3\ns_cbranch_scc1 L_ctrl' % sWV)
    aWQ = aW0 + 20
    srd(A_SRD, pWQ, 7864320)
    A('s_mul_i32 %s, %s, %d\ns_mul_i32 %s, %s, 384\ns_add_u32 %s, %s, %s\ns_lshl_b32 %s, %s, 7\ns_add_u32 %s, %s, %s' % (sA, sS, 80 * 12288, sB, sH, sA, sA, sB, sB, sWV, sA, sA, sB))
    A('v_mul_u32_u24 %s, 12288, v%d\nv_lshl_add_u32 %s, v%d, 4, %s' % (T(2), vG, T(2), vC, T(2)))
    for t in range(10):
        A('buffer_load_dwordx4 %s, %s, %s, %s offen %s' % (vq(aWQ + 4 * t, 4, 'a'), T(2), sq(A_SRD), sA, wflags))
        if t < 9: A('s_add_u32 %s, %s, 98304' % (sA, sA))
    issue_ring()
    tags()
    n = stageM(10 + 12 * NB)
    A('L_noM%d:' % n)
    stamp(1)
    A('s_barrier')
    stamp(2)
    A('v_lshlrev_b32 %s, 2, v%d' % (T(0), vG))
    for t in range(10): A('ds_read_b32 %s, %s offset:%d' % (T(1 + t), T(0), L_H + 32 * t))
    A('s_waitcnt vmcnt(%d) lgkmcnt(0)' % (12 * NB))
    for t in range(10): selmfma(vACC, vT + 1 + t, vq(aWQ + 4 * t, 4, 'a'), t & 1, t == 0)
    A('v_lshrrev_b32 %s, 4, v0\nv_lshl_add_u32 %s, v%d, 1, %s\nv_lshlrev_b32 %s, 4, %s' % (T(0), T(0), vC, T(0), T(0), T(0)))
    A('s_lshl_b32 %s, s2, 10\ns_lshl_b32 %s, %s, 8\ns_add_u32 %s, %s, %s\ns_add_u32 %s, %s, %d' % (sA, sB, sWV, sA, sA, sB, sA, sA, WS_Q))
    pair_sum(vACC, vT + 4)
    enc(vACC)
    setexec(0x00ff00ff)
    A('buffer_store_dwordx4 %s, %s, %s, %s offen sc1' % (vq(vACC), T(0), sq(WS_SRD), sA))
    setexec(-1)
    A('s_branch L_qwait')
    A('L_ctrl:')
    srd(A_SRD, pX, 1280)
    vX0, vX1, vXs = vT + 16, vT + 20, vT + 24
    vBIG = 224
    A('v_lshlrev_b32 %s, 4, v0' % T(3))
    A('buffer_load_dwordx4 %s, %s, %s, 0 offen' % (vq(vX0), T(3), sq(A_SRD)))
    A('buffer_load_dwordx4 %s, %s, %s, 0 offen offset:1024' % (vq(vX1), T(3), sq(A_SRD)))
    A('v_lshlrev_b32 %s, 3, v0\ns_mul_i32 %s, %s, 160' % (T(4), sA, sS))
    A('buffer_load_dwordx2 %s, %s, %s, %s offen' % (vq(vXs, 2), T(4), sq(A_SRD), sA))
    if w3pre: issue_ring()
    tags()
    n = stageM(3 + (12 * NB if w3pre else 0))
    l1addr(vT + 0, 0, vT + 1)
    A('v_lshlrev_b32 %s, 4, v0' % T(3))
    red16(vT + 4, L_RED, vBIG, vT + 0)
    enc(vT + 4)
    A('s_and_b32 %s, s2, 3\ns_mul_i32 %s, %s, 15360\ns_lshr_b32 %s, s2, 2\ns_lshl_b32 %s, %s, 8\ns_add_u32 %s, %s, %s\ns_add_u32 %s, %s, %d' % (sA, sA, sA, sB, sB, sB, sA, sA, sB, sA, sA, WS_M))
    setexec(0xffff)
    A('buffer_store_dwordx4 %s, %s, %s, %s offen sc1' % (vq(vT + 4), T(3), sq(WS_SRD), sA))
    setexec(-1)
    A('s_waitcnt vmcnt(%d)\ns_branch L_xok' % (1 + 12 * NB if w3pre else 1))
    A('L_noM%d:' % n)
    A('s_waitcnt vmcnt(%d)' % (12 * NB if w3pre else 0))
    A('L_xok:')
    stamp(1)
    vU = vBIG
    unpack4(vU, vX0); unpack4(vU + 4, vX0 + 2); unpack4(vU + 8, vX1); unpack4(vU + 12, vX1 + 2)
    A('v_add_f32 %s, v%d, v%d' % (T(8), vU, vU + 1))
    for i in range(2, 16): A('v_add_f32 %s, %s, v%d' % (T(8), T(8), vU + i))
    wave_sum(vT + 8, vT + 9)
    A('v_mul_f32 %s, 0x%x, %s' % (T(8), 0x3ACCCCCD, T(8)))
    for i in range(16): A('v_sub_f32 v%d, v%d, %s' % (vU + i, vU + i, T(8)))
    A('v_mul_f32 %s, v%d, v%d' % (T(10), vU, vU))
    for i in range(1, 8): A('v_fmac_f32 %s, v%d, v%d' % (T(10), vU + i, vU + i))
    setexec(0xffff)
    for i in range(8, 16): A('v_fmac_f32 %s, v%d, v%d' % (T(10), vU + i, vU + i))
    setexec(-1)
    wave_sum(vT + 10, vT + 9)
    def finish_stats(m, v):
        A('v_mul_f32 v%d, 0x%x, v%d' % (v, 0x3ACCCCCD, v))
        rnd1(m); rnd1(v)
        A('v_add_f32 v%d, 0x%x, v%d' % (v, 0x3727C5AC, v))
        rnd1(v)
        A('v_sqrt_f32 v%d, v%d' % (v, v))
        rnd1(v)
        A('v_rcp_f32 v%d, v%d' % (v, v))
    finish_stats(vT + 8, vT + 10)
    def normalize(x, m, r, t):
        for i in range(4): A('v_sub_f32 v%d, v%d, v%d' % (x + i, x + i, m))
        rnd4(x, t)
        for i in range(4): A('v_mul_f32 v%d, v%d, v%d' % (x + i, x + i, r))
        rnd4(x, t)
    vN = vT + 12
    unpack4(vN, vXs)
    normalize(vN, vT + 8, vT + 10, vT + 0)
    A('v_and_b32 %s, 31, v0\nv_lshrrev_b32 %s, 5, v0\nv_mul_u32_u24 %s, 2560, %s\nv_lshl_add_u32 %s, %s, 4, %s' % (T(2), T(3), T(3), T(3), T(2), T(2), T(3)))
    A('s_mul_i32 %s, %s, 320\ns_add_u32 %s, %s, %d' % (sA, sS, sA, sA, WS_M))
    A('s_add_u32 %s, %s, 15360\ns_add_u32 %s, %s, 15360\ns_add_u32 %s, %s, 15360' % (sB, sA, sC_, sB, sD, sC_))
    def iss():
        for i, s in enumerate((sA, sB, sC_, sD)):
            A('buffer_load_dwordx4 %s, %s, %s, %s offen sc1' % (vq(vBIG + 4 * i), T(2), sq(WS_SRD), s))
    poll(iss, [vBIG + 4 * i for i in range(4)], T(3), 0x000fffff000fffff)
    setexec(-1)
    vS_ = vT + 4
    sum_gran(vS_, [vBIG + 4 * i for i in range(4)])
    rnd4(vS_, vT + 0)
    vCa = vT + 16
    for i in range(4): A('v_mov_b32 v%d, v%d' % (vCa + i, vS_ + i))
    for i in range(4): A('v_permlane32_swap_b32 v%d, v%d' % (vS_ + i, vCa + i))
    def modulate(x, cc, ss, t):
        for i in range(4): A('v_mul_f32 v%d, v%d, v%d' % (x + i, x + i, cc + i))
        rnd4(x, t)
        for i in range(4): A('v_add_f32 v%d, v%d, v%d' % (x + i, x + i, ss + i))
        for i in range(4): A('v_cvt_pk_bf16_f32 v%d, v%d, v%d' % (x + i, x + i, x + i))
    for i in range(4): A('v_add_f32 v%d, 1.0, v%d' % (vCa + i, vCa + i))
    rnd4(vCa, vT + 0)
    modulate(vN, vCa, vS_, vT + 0)
    A('v_lshlrev_b32 %s, 4, v0' % T(3))
    setexec(0xfffff)
    A('ds_write_b128 %s, %s offset:%d' % (T(3), vq(vN), L_H))
    setexec(-1)
    A('s_waitcnt lgkmcnt(0)\ns_barrier')
    stamp(2)
    A('s_lshl_b32 %s, %s, 13\ns_add_u32 %s, %s, %d\ns_add_u32 %s, %s, 4096' % (sA, sH, sA, sA, WS_Q, sB, sA))
    def iss():
        for i in range(8):
            A('buffer_load_dwordx4 %s, %s, %s, %s offen offset:%d sc1' % (vq(vBIG + 4 * i), T(3), sq(WS_SRD), sA if i < 4 else sB, (i % 4) * 1024))
    poll(iss, [vBIG + 4 * i for i in range(8)], T(2), (1 << 48) - 1)
    sum_gran(vS_, [vBIG + 4 * i for i in range(8)])
    A('v_cvt_pk_bf16_f32 %s, v%d, v%d\nv_cvt_pk_bf16_f32 %s, v%d, v%d' % (T(0), vS_, vS_ + 1, T(1), vS_ + 2, vS_ + 3))
    A('v_lshlrev_b32 %s, 3, v0\nds_write_b64 %s, %s offset:%d' % (T(2), T(2), vq(vT, 2), L_Q))
    setexec(-1)
    if not w3pre: issue_ring()
    A('s_waitcnt lgkmcnt(0)')
    A('L_qwait:')
    A('s_barrier')
    A('v_lshlrev_b32 %s, 4, v%d' % (T(0), vC))
    for i in range(3): A('ds_read_b128 %s, %s offset:%d' % (vq(vQ + 4 * i), T(0), L_Q + 128 * i))
    for i in range(12): A('v_mov_b32 v%d, 0' % (vACC + i))
    A('v_mov_b32 v%d, 0\ns_mov_b32 %s, 0xff800000\ns_mov_b32 %s, 0xff800000' % (vLS, sM, sML))
    A('s_waitcnt lgkmcnt(0)')
    stamp(3)
    if pad_q: pad(pad_q)
    slow = []
    def tile(b, nK, nV, reissue):
        lab[0] += 1; n = lab[0]
        kb = vK0 + 24 * b
        s0, s1, s0b, s1b = vT, vT + 1, vT + 2, vT + 3
        A('s_waitcnt vmcnt(%d)' % nK)
        for i in range(3):
            for j in range(4):
                for gk in range(2):
                    d = (s0, s1)[gk] if (j & 1) == 0 else (s0b, s1b)[gk]
                    k = kb + 12 * gk + 4 * i + j
                    if i == 0 and j < 2: A('v_dot2_f32_bf16 v%d, v%d, v%d, 0' % (d, k, vQ + 4 * i + j))
                    else: A('v_dot2_f32_bf16 v%d, v%d, v%d, v%d' % (d, k, vQ + 4 * i + j, d))
        if reissue: issueK(b)
        A('v_add_f32 v%d, v%d, v%d\nv_add_f32 v%d, v%d, v%d' % (s0, s0, s0b, s1, s1, s1b))
        for pat in ('quad_perm:[1,0,3,2]', 'quad_perm:[2,3,0,1]', 'row_half_mirror'):
            A('v_add_f32_dpp v%d, v%d, v%d %s %s' % (s0, s0, s0, pat, DPP))
            A('v_add_f32_dpp v%d, v%d, v%d %s %s' % (s1, s1, s1, pat, DPP))
        A('v_cvt_pk_bf16_f32 v%d, v%d, v%d' % (s0b, s0, s1))
        A('v_lshlrev_b32 v%d, 16, v%d\nv_and_b32 v%d, 0xffff0000, v%d' % (s0, s0b, s1, s0b))
        A('v_mul_f32 v%d, 0x%x, v%d\nv_mul_f32 v%d, 0x%x, v%d' % (s0, SCALE, s0, s1, SCALE, s1))
        A('v_cvt_pk_bf16_f32 v%d, v%d, v%d' % (s0b, s0, s1))
        A('v_lshlrev_b32 v%d, 16, v%d\nv_and_b32 v%d, 0xffff0000, v%d' % (s0, s0b, s1, s0b))
        A('v_max_f32 v%d, v%d, v%d' % (s0b, s0, s1))
        A('v_cmp_lt_f32 vcc, %s, v%d' % (sM, s0b))
        A('s_cbranch_vccnz L_slow%d' % n)
        A('L_back%d:' % n)
        A('v_fma_f32 v%d, v%d, v%d, -%s\nv_fma_f32 v%d, v%d, v%d, -%s' % (s0, s0, vLG2, sML, s1, s1, vLG2, sML))
        A('v_exp_f32 v%d, v%d\nv_exp_f32 v%d, v%d' % (s0, s0, s1, s1))
        A('v_add_f32 v%d, v%d, v%d\nv_cvt_pk_bf16_f32 v%d, v%d, v%d' % (vLS, vLS, s0, s0, s0, s0))
        A('v_add_f32 v%d, v%d, v%d\nv_cvt_pk_bf16_f32 v%d, v%d, v%d' % (vLS, vLS, s1, s1, s1, s1))
        for r in range(4): A('v_and_b32 v%d, v%d, v%d' % (vA0 + r, vMK[r], s0))
        for r in range(4): A('v_and_b32 v%d, v%d, v%d' % (vA1 + r, vMK[r], s1))
        A('s_waitcnt vmcnt(%d)' % nV)
        for gk in range(2):
            for i in range(3):
                A('v_mfma_f32_16x16x32_bf16 %s, %s, %s, %s' % (vq(vACC + 4 * i), vq((vA0, vA1)[gk]), vq(aV0 + 24 * b + 12 * gk + 4 * i, 4, 'a'), vq(vACC + 4 * i)))
        if reissue:
            issueV(b); A('s_add_u32 %s, %s, %d' % (sOFF, sOFF, STEP))
        slow.append(n)
    assert 64 % NB == 0
    A('s_mov_b32 %s, %d' % (sCNT, 64 // NB - 1))
    A('L_loop:')
    for b in range(NB): tile(b, 12 * NB - 6, 12 * NB - 6, True)
    A('s_sub_u32 %s, %s, 1\ns_cmp_lg_u32 %s, 0\ns_cbranch_scc1 L_loop' % (sCNT, sCNT, sCNT))
    for b in range(NB): tile(b, 12 * (NB - b) - 6, 12 * (NB - b - 1), False)
    stamp(4)
    A('s_cmp_lt_u32 %s, 10\ns_cbranch_scc0 L_notWload' % sKP)
    srd(A_SRD, pWO, 7864320)
    A('s_lshl_b32 %s, %s, 2\ns_add_u32 %s, %s, %s\ns_mul_i32 %s, %s, %d\ns_lshl_b32 %s, %s, 7\ns_add_u32 %s, %s, %s' % (sA, sS, sA, sA, sWV, sA, sA, 192 * 1280, sB, sKP, sA, sA, sB))
    A('v_mul_u32_u24 %s, %d, v%d\nv_lshl_add_u32 %s, v%d, 4, %s' % (T(8), 24 * 1280, vG, T(8), vC, T(8)))
    for t in range(24):
        A('buffer_load_dwordx4 %s, %s, %s, %s offen offset:%d %s' % (vq(aW0 + 4 * t, 4, 'a'), T(8), sq(A_SRD), sA, (t % 4) * 1280, wflags))
        if t % 4 == 3 and t < 23: A('s_add_u32 %s, %s, 5120' % (sA, sA))
    A('s_branch L_wloaded')
    A('L_notWload:')
    A('s_cmp_lt_u32 %s, 16\ns_cbranch_scc0 L_wloaded' % sKP)
    sF = 's88'
    A('s_mul_i32 %s, %s, 6\ns_add_u32 %s, %s, %s\ns_sub_u32 %s, %s, 10' % (sF, sS, sF, sF, sKP, sF, sF))
    A('v_cmp_gt_u32 vcc, 4, v%d\nv_mov_b32 %s, s%d\nv_mov_b32 %s, s%d\nv_cndmask_b32 %s, %s, %s, vcc' % (vC, T(8), pU, T(9), pG, T(8), T(8), T(9)))
    A('v_mov_b32 %s, s%d\nv_mov_b32 %s, s%d\nv_cndmask_b32 %s, %s, %s, vcc' % (T(9), pU + 1, T(10), pG + 1, T(9), T(9), T(10)))
    A('s_mul_i32 %s, %s, %d\ns_lshl_b32 %s, %s, 6\ns_add_u32 %s, %s, %s' % (sA, sWV, 160 * 3072, sB, sF, sA, sA, sB))
    A('v_mul_u32_u24 %s, %d, v%d\nv_and_b32 %s, 3, v%d\nv_lshl_add_u32 %s, %s, 4, %s\nv_add_u32 %s, %s, %s\nv_mov_b32 %s, 0' % (T(10), 20 * 3072, vG, T(11), vC, T(10), T(11), T(10), T(10), sA, T(10), T(11)))
    A('v_lshl_add_u64 %s, %s, 0, %s' % (vq(vT + 8, 2), vq(vT + 10, 2), vq(vT + 8, 2)))
    A('s_mov_b32 %s, 6144\ns_mov_b32 %s, 0' % (sA, sB))
    for t in range(20):
        A('global_load_dwordx4 %s, %s, off offset:%d %s' % (vq(aW0 + 4 * t, 4, 'a'), vq(vT + 8, 2), (t % 2) * 3072, wflags))
        if t % 2 == 1 and t < 19: A('v_lshl_add_u64 %s, %s, 0, s[76:77]' % (vq(vT + 8, 2), vq(vT + 8, 2)))
    srd(A_SRD, pDN, 1966080)
    A('s_mul_i32 %s, %s, %d\ns_lshl_b32 %s, %s, 7\ns_add_u32 %s, %s, %s' % (sA, sF, 32 * 1280, sB, sWV, sA, sA, sB))
    A('v_mul_u32_u24 %s, 5120, v%d\nv_lshl_add_u32 %s, v%d, 4, %s' % (T(8), vG, T(8), vC, T(8)))
    for cbk in range(3):
        if cbk == 2: A('s_cmp_ge_u32 %s, 2\ns_cbranch_scc1 L_wloaded' % sWV)
        for t in range(4):
            A('buffer_load_dwordx4 %s, %s, %s, %s offen offset:%d %s' % (vq(aW0 + 80 + 16 * cbk + 4 * t, 4, 'a'), T(8), sq(A_SRD), sA, t * 1280, wflags))
        if cbk < 2: A('s_add_u32 %s, %s, 512' % (sA, sA))
    A('L_wloaded:')
    A('v_add_f32_dpp v%d, v%d, v%d row_ror:8 %s' % (vLS, vLS, vLS, DPP))
    rows_op('v_add_f32', vLS, vT + 0)
    A('v_mov_b32 %s, %s\nv_mov_b32 %s, v%d' % (T(0), sM, T(1), vLS))
    A('s_mul_i32 %s, %s, 3072\nv_lshl_add_u32 %s, v0, 4, %s\ns_lshl_b32 %s, %s, 3\nv_mov_b32 %s, %s' % (sA, sWV, T(2), sA, sB, sWV, T(3), sB))
    for i in range(3): A('ds_write_b128 %s, %s offset:%d' % (T(2), vq(vACC + 4 * i), L_RED + 1024 * i))
    A('ds_write_b64 %s, %s offset:%d' % (T(3), vq(vT, 2), L_ML))
    A('s_waitcnt lgkmcnt(0)\ns_barrier')
    A('s_cmp_lg_u32 %s, 0\ns_cbranch_scc1 L_opub' % sWV)
    vML = vT + 4
    A('v_mov_b32 %s, 0' % T(0))
    A('ds_read_b128 %s, %s offset:%d\nds_read_b128 %s, %s offset:%d' % (vq(vML), T(0), L_ML, vq(vML + 4), T(0), L_ML + 16))
    l1addr(vT + 1, 0, vT + 2)
    A('v_lshrrev_b32 %s, 4, v0\nv_min_u32 %s, 2, %s\nv_lshl_add_u32 %s, %s, 10, %s' % (T(2), T(2), T(2), T(1), T(2), T(1)))
    G8 = [vK0 + 4 * i for i in range(8)]
    for w in range(4):
        A('ds_read_b128 %s, %s offset:%d' % (vq(G8[2 * w]), T(1), L_RED + w * 3072))
        A('ds_read_b128 %s, %s offset:%d' % (vq(G8[2 * w + 1]), T(1), L_RED + w * 3072 + 640))
    A('s_waitcnt lgkmcnt(8)')
    vMx, vLx = vT + 12, vT + 13
    A('v_max3_f32 v%d, v%d, v%d, v%d\nv_max_f32 v%d, v%d, v%d' % (vMx, vML, vML + 2, vML + 4, vMx, vMx, vML + 6))
    A('v_mul_f32 %s, v%d, v%d' % (T(14), vLG2, vMx))
    for w in range(4): A('v_mul_f32 v%d, v%d, v%d' % (vML + 2 * w, vLG2, vML + 2 * w))
    for w in range(4): A('v_sub_f32 v%d, v%d, %s' % (vML + 2 * w, vML + 2 * w, T(14)))
    for w in range(4): A('v_exp_f32 v%d, v%d' % (vML + 2 * w, vML + 2 * w))
    A('v_mul_f32 v%d, v%d, v%d' % (vLx, vML, vML + 1))
    for w in range(1, 4): A('v_fmac_f32 v%d, v%d, v%d' % (vLx, vML + 2 * w, vML + 2 * w + 1))
    A('s_waitcnt lgkmcnt(0)')
    vO = vT + 16
    for w in range(4):
        for i in range(4): A('v_add_f32 v%d, v%d, v%d' % (G8[2 * w] + i, G8[2 * w] + i, G8[2 * w + 1] + i))
    for i in range(4): A('v_mul_f32 v%d, v%d, v%d' % (vO + i, G8[0] + i, vML))
    for w in range(1, 4):
        for i in range(4): A('v_fmac_f32 v%d, v%d, v%d' % (vO + i, G8[2 * w] + i, vML + 2 * w))
    A('v_cmp_eq_u32 vcc, 48, v0\nv_cndmask_b32 v%d, v%d, v%d, vcc\nv_cndmask_b32 v%d, v%d, v%d, vcc' % (vO, vO, vMx, vO + 1, vO + 1, vLx))
    enc(vO)
    A('v_lshlrev_b32 %s, 4, v0\ns_lshl_b32 %s, s2, 10\ns_add_u32 %s, %s, %d' % (T(0), sA, sA, sA, WS_O))
    setexec((1 << 49) - 1)
    A('buffer_store_dwordx4 %s, %s, %s, %s offen sc1' % (vq(vO), T(0), sq(WS_SRD), sA))
    setexec(-1)
    A('L_opub:')
    stamp(5)
    A('s_cmp_lt_u32 %s, 10\ns_cbranch_scc1 L_roleW' % sKP)
    A('s_cmp_lt_u32 %s, 16\ns_cbranch_scc1 L_roleF' % sKP)
    A('s_cmp_eq_u32 %s, 16\ns_cbranch_scc1 L_roleR' % sKP)
    A('s_cmp_eq_u32 %s, 17\ns_cbranch_scc0 L_fin\ns_cmp_lt_u32 %s, 2\ns_cbranch_scc1 L_roleR\ns_branch L_fin' % (sKP, sS))
    G9 = [vK0 + 4 * i for i in range(12)] if NB >= 2 else None
    assert NB >= 2
    A('L_roleW:')
    A('s_lshl_b32 %s, %s, 2\ns_add_u32 %s, %s, %s\ns_lshl_b32 %s, %s, 13\ns_add_u32 %s, %s, %d\ns_add_u32 %s, %s, 4096' % (sA, sS, sA, sA, sWV, sA, sA, sA, sA, WS_O, sB, sA))
    A('v_min_u32 %s, 47, v0\nv_lshlrev_b32 %s, 4, %s\nv_lshlrev_b32 %s, 10, v%d' % (T(0), T(0), T(0), T(1), vC))
    def iss():
        A('buffer_load_dwordx4 %s, %s, %s, %s offen offset:768 sc1' % (vq(G9[8]), T(1), sq(WS_SRD), sA))
        for i in range(8):
            A('buffer_load_dwordx4 %s, %s, %s, %s offen offset:%d sc1' % (vq(G9[i]), T(0), sq(WS_SRD), sA if i < 4 else sB, (i % 4) * 1024))
    poll(iss, G9[:9], T(2))
    stamp(6)
    m_, l_ = G9[8], G9[8] + 1
    A('v_max_f32_dpp %s, v%d, v%d quad_perm:[1,0,3,2] %s' % (T(2), m_, m_, DPP))
    A('v_max_f32_dpp %s, %s, %s quad_perm:[2,3,0,1] %s' % (T(2), T(2), T(2), DPP))
    A('v_max_f32_dpp %s, %s, %s row_half_mirror %s' % (T(2), T(2), T(2), DPP))
    A('v_mul_f32 v%d, v%d, v%d\nv_mul_f32 %s, v%d, %s\nv_sub_f32 v%d, v%d, %s\nv_exp_f32 v%d, v%d' % (m_, vLG2, m_, T(2), vLG2, T(2), m_, m_, T(2), m_, m_))
    A('v_mul_f32 v%d, v%d, v%d' % (l_, l_, m_))
    for pat in ('quad_perm:[1,0,3,2]', 'quad_perm:[2,3,0,1]', 'row_half_mirror'):
        A('v_add_f32_dpp v%d, v%d, v%d %s %s' % (l_, l_, l_, pat, DPP))
    A('v_rcp_f32 v%d, v%d\nv_mul_f32 v%d, v%d, v%d' % (l_, l_, m_, m_, l_))
    for i in range(8): A('v_readlane_b32 s%d, v%d, %d' % (sW[i], m_, i))
    for i in range(4): A('v_mul_f32 v%d, s%d, v%d' % (vO + i, sW[0], G9[0] + i))
    for s_ in range(1, 8):
        for i in range(4): A('v_fmac_f32 v%d, s%d, v%d' % (vO + i, sW[s_], G9[s_] + i))
    for i in range(4): A('v_cvt_pk_bf16_f32 v%d, v%d, v%d' % (vO + i, vO + i, vO + i))
    A('s_mul_i32 %s, %s, 768\nv_add_u32 %s, %s, %s' % (sA, sWV, T(0), sA, T(0)))
    A('ds_write_b128 %s, %s offset:%d' % (T(0), vq(vO), L_O))
    A('v_mul_u32_u24 %s, 96, v%d\nv_add_u32 %s, %s, %s\ns_waitcnt lgkmcnt(0)' % (T(1), vG, T(1), sA, T(1)))
    for q_ in range(6): A('ds_read_b128 %s, %s offset:%d' % (vq(vK0 + 4 * q_), T(1), L_O + 16 * q_))
    A('s_waitcnt lgkmcnt(0)')
    for t in range(24): selmfma(vACC, vK0 + t, vq(aW0 + 4 * t, 4, 'a'), t & 1, t == 0)
    A('v_lshlrev_b32 %s, 4, v0\ns_lshl_b32 %s, %s, 10\nv_add_u32 %s, %s, %s' % (T(0), sA, sWV, T(2), sA, T(0)))
    l1addr(vT + 1, 0, vT + 3)
    A('ds_write_b128 %s, %s offset:%d\ns_waitcnt lgkmcnt(0)\ns_barrier' % (T(2), vq(vACC), L_RED2))
    A('s_cmp_lg_u32 %s, 0\ns_cbranch_scc1 L_fin' % sWV)
    red16(vO, L_RED2, vK0, vT + 1)
    enc(vO)
    A('s_mul_i32 %s, %s, 2560\ns_lshl_b32 %s, %s, 8\ns_add_u32 %s, %s, %s\ns_add_u32 %s, %s, %d' % (sA, sS, sB, sKP, sA, sA, sB, sA, sA, WS_Y))
    setexec(0xffff)
    A('buffer_store_dwordx4 %s, %s, %s, %s offen sc1' % (vq(vO), T(0), sq(WS_SRD), sA))
    setexec(-1)
    stamp(7)
    A('s_branch L_fin')
    def gather_mod(dst, which, voff, soff_cols, mask, tmpregs):
        A('s_add_u32 %s, %s, %d' % (sA, soff_cols, WS_M + which * 2560))
        A('s_add_u32 %s, %s, 15360\ns_add_u32 %s, %s, 15360\ns_add_u32 %s, %s, 15360' % (sB, sA, sC_, sB, sD, sC_))
        def iss():
            for i, s in enumerate((sA, sB, sC_, sD)):
                A('buffer_load_dwordx4 %s, %s, %s, %s offen sc1' % (vq(tmpregs[i]), voff, sq(WS_SRD), s))
        poll(iss, tmpregs[:4], T(2), mask)
        sum_gran(dst, tmpregs[:4])
        rnd4(dst, vT + 2)
    def gather_y(dst, voff, soff_cols, mask, tmpregs):
        A('s_add_u32 %s, %s, %d\ns_add_u32 %s, %s, 5120\ns_add_u32 %s, %s, 5120\ns_add_u32 %s, %s, 5120' % (sA, soff_cols, WS_Y, sB, sA, sC_, sB, sD, sC_))
        def iss():
            for i in range(8):
                A('buffer_load_dwordx4 %s, %s, %s, %s offen offset:%d sc1' % (vq(tmpregs[i]), voff, sq(WS_SRD), (sA, sB, sC_, sD)[i // 2], (i % 2) * 2560))
        poll(iss, tmpregs[:8], T(2), mask)
        stamp(6)
        sum_gran(dst, tmpregs[:8])
        rnd4(dst, vT + 2)
    def resid(x, g_, a_, t):
        for i in range(4): A('v_mul_f32 v%d, v%d, v%d' % (a_ + i, a_ + i, g_ + i))
        rnd4(a_, t)
        for i in range(4): A('v_add_f32 v%d, v%d, v%d' % (x + i, x + i, a_ + i))
    vGA, vSB, vCB, vXX, vAA = vT + 8, vT + 12, vT + 16, vT + 20, vT + 24
    sCOL = 's89'
    A('L_roleF:')
    M40 = (1 << 40) - 1
    srd(B_SRD, pX, 1280)
    A('s_mul_i32 %s, %s, 640\ns_mul_i32 %s, %s, 320' % (sCOL, sWV, sA, sWV))
    A('v_lshlrev_b32 %s, 4, v0\nv_lshlrev_b32 %s, 3, v0' % (T(0), T(1)))
    A('buffer_load_dwordx2 %s, %s, %s, %s offen' % (vq(vAA, 2), T(1), sq(B_SRD), sA))
    for i in range(4): A('v_mov_b32 v%d, 0' % (vXX + i))
    gather_mod(vGA, 2, T(0), sCOL, M40, G9)
    gather_mod(vSB, 3, T(0), sCOL, M40, G9)
    gather_mod(vCB, 4, T(0), sCOL, M40, G9)
    unpack4(vXX, vAA)
    for i in range(4): A('v_add_f32 v%d, 1.0, v%d' % (vCB + i, vCB + i))
    rnd4(vCB, vT + 2)
    gather_y(vAA, T(0), sCOL, M40, G9)
    resid(vXX, vGA, vAA, vT + 2)
    rnd4(vXX, vT + 2)
    setexec(-1)
    A('v_add_f32 %s, v%d, v%d\nv_add_f32 %s, v%d, v%d\nv_add_f32 %s, %s, %s' % (T(4), vXX, vXX + 1, T(5), vXX + 2, vXX + 3, T(4), T(4), T(5)))
    wave_sum(vT + 4, vT + 5)
    A('v_mul_f32 %s, 0x%x, %s\nv_mov_b32 %s, 0' % (T(4), 0x3BCCCCCD, T(4), T(5)))
    setexec(M40)
    for i in range(4): A('v_sub_f32 v%d, v%d, %s' % (vAA + i, vXX + i, T(4)))
    for i in range(4): A('v_fmac_f32 %s, v%d, v%d' % (T(5), vAA + i, vAA + i))
    setexec(-1)
    wave_sum(vT + 5, vT + 6)
    A('s_lshl_b32 %s, %s, 3\nv_mov_b32 %s, %s\nds_write_b64 %s, %s offset:%d' % (sA, sWV, T(6), sA, T(6), vq(vT + 4, 2), L_ST))
    A('v_mov_b32 %s, 0\ns_waitcnt lgkmcnt(0)\ns_barrier' % T(6))
    A('ds_read_b128 %s, %s offset:%d\nds_read_b128 %s, %s offset:%d\ns_waitcnt lgkmcnt(0)' % (vq(G9[0]), T(6), L_ST, vq(G9[1]), T(6), L_ST + 16))
    mu = [G9[0], G9[0] + 2, G9[1], G9[1] + 2]
    A('v_add_f32 %s, v%d, v%d\nv_add_f32 %s, v%d, v%d\nv_add_f32 %s, %s, %s\nv_mul_f32 %s, 0x3e800000, %s' % (T(4), mu[0], mu[1], T(5), mu[2], mu[3], T(4), T(4), T(5), T(4), T(4)))
    for w in range(4): A('v_sub_f32 v%d, v%d, %s' % (mu[w], mu[w], T(4)))
    A('v_mul_f32 %s, v%d, v%d' % (T(5), mu[0], mu[0]))
    for w in range(1, 4): A('v_fmac_f32 %s, v%d, v%d' % (T(5), mu[w], mu[w]))
    A('v_mul_f32 %s, 0x43200000, %s' % (T(5), T(5)))
    for w in range(4): A('v_add_f32 %s, %s, v%d' % (T(5), T(5), mu[w] + 1))
    finish_stats(vT + 4, vT + 5)
    normalize(vXX, vT + 4, vT + 5, vT + 2)
    modulate(vXX, vCB, vSB, vT + 2)
    A('v_add_u32 %s, %s, %s' % (T(1), sCOL, T(0)))
    setexec(M40)
    A('ds_write_b128 %s, %s offset:%d' % (T(1), vq(vXX), L_X))
    setexec(-1)
    A('v_mul_u32_u24 %s, 80, v%d\nv_add_u32 %s, %s, %s\ns_waitcnt lgkmcnt(0)' % (T(1), vG, T(1), sCOL, T(1)))
    for q_ in range(5): A('ds_read_b128 %s, %s offset:%d' % (vq(vK0 + 4 * q_), T(1), L_X + 16 * q_))
    A('s_waitcnt lgkmcnt(0)')
    for t in range(20): selmfma(vACC, vK0 + t, vq(aW0 + 4 * t, 4, 'a'), t & 1, t == 0)
    A('s_lshl_b32 %s, %s, 10\nv_add_u32 %s, %s, %s' % (sA, sWV, T(2), sA, T(0)))
    l1addr(vT + 1, vG, vT + 3)
    A('ds_write_b128 %s, %s offset:%d\ns_waitcnt lgkmcnt(0)\ns_barrier' % (T(2), vq(vACC), L_RED2))
    vGt, vUp = vT + 8, vT + 12
    red16(vGt, L_RED2, vK0, vT + 1)
    red16(vUp, L_RED2 + 64, vK0, vT + 1)
    rnd4(vGt, vT + 2); rnd4(vUp, vT + 2)
    vE = vT + 16
    for i in range(4): A('v_mul_f32 v%d, v%d, v%d' % (vE + i, vGt + i, vGt + i))
    A('v_mov_b32 %s, 0x3d372713' % T(2))
    for i in range(4): A('v_fma_f32 v%d, v%d, %s, 1.0' % (vE + i, vE + i, T(2)))
    for i in range(4): A('v_mul_f32 v%d, v%d, v%d' % (vE + i, vE + i, vGt + i))
    for i in range(4): A('v_mul_f32 v%d, 0x%x, v%d' % (vE + i, 0xC0135761, vE + i))
    for i in range(4): A('v_exp_f32 v%d, v%d' % (vE + i, vE + i))
    for i in range(4): A('v_add_f32 v%d, 1.0, v%d' % (vE + i, vE + i))
    for i in range(4): A('v_rcp_f32 v%d, v%d' % (vE + i, vE + i))
    for i in range(4): A('v_mul_f32 v%d, v%d, v%d' % (vGt + i, vGt + i, vE + i))
    rnd4(vGt, vT + 2)
    for i in range(4): A('v_mul_f32 v%d, v%d, v%d' % (vGt + i, vGt + i, vUp + i))
    for i in range(4): A('v_cvt_pk_bf16_f32 v%d, v%d, v%d' % (vGt + i, vGt + i, vGt + i))
    vAS = vK0
    for t in range(4):
        for r in range(4): A('v_and_b32 v%d, v%d, v%d' % (vAS + 4 * t + r, vMK[r], vGt + t))
    A('v_lshrrev_b32 %s, 4, v0\nv_lshl_add_u32 %s, v%d, 1, %s\nv_lshlrev_b32 %s, 4, %s' % (T(0), T(0), vC, T(0), T(0), T(0)))
    A('s_mul_i32 %s, %s, 2560\ns_lshl_b32 %s, %s, 8\ns_add_u32 %s, %s, %s\ns_add_u32 %s, %s, %d' % (sA, sF, sB, sWV, sA, sA, sB, sA, sA, WS_D))
    for t in range(4):
        for cbk in range(2):
            A('v_mfma_f32_16x16x32_bf16 %s, %s, %s, %s' % (vq(vACC + 4 * cbk), vq(vAS + 4 * t), vq(aW0 + 80 + 16 * cbk + 4 * t, 4, 'a'), '0' if t == 0 else vq(vACC + 4 * cbk)))
    A('s_cmp_ge_u32 %s, 2\ns_cbranch_scc1 L_d2' % sWV)
    for t in range(4):
        A('v_mfma_f32_16x16x32_bf16 %s, %s, %s, %s' % (vq(vACC + 8), vq(vAS + 4 * t), vq(aW0 + 80 + 32 + 4 * t, 4, 'a'), '0' if t == 0 else vq(vACC + 8)))
    A('L_d2:')
    for cbk in range(2):
        pair_sum(vACC + 4 * cbk, vT + 4); enc(vACC + 4 * cbk)
        setexec(0x00ff00ff)
        A('buffer_store_dwordx4 %s, %s, %s, %s offen offset:%d sc1' % (vq(vACC + 4 * cbk), T(0), sq(WS_SRD), sA, 1024 * cbk))
        setexec(-1)
    A('s_cmp_ge_u32 %s, 2\ns_cbranch_scc1 L_d3' % sWV)
    pair_sum(vACC + 8, vT + 4); enc(vACC + 8)
    setexec(0x00ff00ff)
    A('buffer_store_dwordx4 %s, %s, %s, %s offen offset:2048 sc1' % (vq(vACC + 8), T(0), sq(WS_SRD), sA))
    setexec(-1)
    A('L_d3:')
    stamp(7)
    A('s_branch L_fin')
    A('L_roleR:')
    sRW = 's88'
    A('s_sub_u32 %s, %s, 16\ns_lshl_b32 %s, %s, 3\ns_add_u32 %s, %s, %s\ns_lshl_b32 %s, %s, 2\ns_add_u32 %s, %s, %s' % (sRW, sKP, sRW, sRW, sRW, sRW, sS, sRW, sRW, sRW, sRW, sWV))
    srd(B_SRD, pX, 1280)
    A('s_lshl_b32 %s, %s, 6\ns_lshl_b32 %s, %s, 5' % (sCOL, sRW, sA, sRW))
    A('v_and_b32 %s, 3, v0\nv_lshlrev_b32 %s, 4, %s\nv_lshlrev_b32 %s, 3, %s' % (T(1), T(0), T(1), T(1), T(1)))
    A('buffer_load_dwordx2 %s, %s, %s, %s offen' % (vq(vAA, 2), T(1), sq(B_SRD), sA))
    gather_mod(vGA, 2, T(0), sCOL, None, G9)
    gather_mod(vSB, 5, T(0), sCOL, None, G9)
    unpack4(vXX, vAA)
    gather_y(vAA, T(0), sCOL, None, G9)
    resid(vXX, vGA, vAA, vT + 2)
    rnd4(vXX, vT + 2)
    A('v_lshrrev_b32 %s, 2, v0\nv_mul_u32_u24 %s, 2560, %s\nv_add_u32 %s, %s, %s' % (T(3), T(3), T(3), T(3), T(3), T(0)))
    A('s_add_u32 %s, %s, %d\ns_add_u32 %s, %s, 40960\ns_add_u32 %s, %s, 40960' % (sA, sCOL, WS_D, sB, sA, sC_, sB))
    def iss():
        for i, s in enumerate((sA, sB, sC_)):
            A('buffer_load_dwordx4 %s, %s, %s, %s offen sc1' % (vq(G9[i]), T(3), sq(WS_SRD), s))
    poll(iss, G9[:3], T(2))
    stamp(7)
    sum_gran(vAA, G9[:3])
    for pat in ('row_ror:4', 'row_ror:8'):
        for i in range(4): A('v_add_f32_dpp v%d, v%d, v%d %s %s' % (vAA + i, vAA + i, vAA + i, pat, DPP))
    for sw in ('v_permlane16_swap_b32', 'v_permlane32_swap_b32'):
        for i in range(4): A('v_mov_b32 v%d, v%d' % (vCB + i, vAA + i))
        for i in range(4): A('%s v%d, v%d' % (sw, vAA + i, vCB + i))
        for i in range(4): A('v_add_f32 v%d, v%d, v%d' % (vAA + i, vAA + i, vCB + i))
    rnd4(vAA, vT + 2)
    resid(vXX, vSB, vAA, vT + 2)
    A('v_cvt_pk_bf16_f32 %s, v%d, v%d\nv_cvt_pk_bf16_f32 %s, v%d, v%d' % (T(4), vXX, vXX + 1, T(5), vXX + 2, vXX + 3))
    srd(A_SRD, pOUT, 1280)
    A('s_lshl_b32 %s, %s, 5' % (sA, sRW))
    setexec(0xf)
    A('buffer_store_dwordx2 %s, %s, %s, %s offen' % (vq(vT + 4, 2), T(1), sq(A_SRD), sA))
    A('s_cmp_lg_u32 %s, 0\ns_cbranch_scc1 L_noepoch' % sRW)
    A('v_mov_b32 %s, s%d\nv_mov_b32 %s, 0' % (T(6), sT[0], T(7)))
    setexec(1)
    A('buffer_store_dword %s, %s, %s, 0 offen offset:%d sc1' % (T(6), T(7), sq(WS_SRD), WS_EPOCH))
    A('L_noepoch:')
    setexec(-1)
    A('L_fin:')
    if pad_to: pad(pad_to)
    if diag:
        stamp(8)
        A('s_getreg_b32 %s, hwreg(HW_REG_XCC_ID)\nv_writelane_b32 v%d, %s, 15' % (sA, vSTAMP, sA))
        A('s_lshl_b32 %s, s2, 2\ns_add_u32 %s, %s, %s\ns_lshl_b32 %s, %s, 6\ns_add_u32 %s, %s, %d' % (sA, sA, sA, sWV, sA, sA, sA, sA, WS_STAMP))
        A('v_lshlrev_b32 %s, 2, v0' % T(0))
        setexec(0xffff)
        A('buffer_store_dword v%d, %s, %s, %s offen' % (vSTAMP, T(0), sq(WS_SRD), sA))
    A('s_waitcnt vmcnt(0)')
    A('L_done:\ns_endpgm')
    for n in slow:
        s0b, t1, t2 = vT + 2, vT + 3, vT + 4
        A('L_slow%d:' % n)
        A('v_max_f32_dpp v%d, v%d, v%d row_ror:8 %s' % (s0b, s0b, s0b, DPP))
        rows_op('v_max_f32', s0b, t1)
        A('v_mul_f32 v%d, v%d, v%d' % (t1, vLG2, s0b))
        A('v_sub_f32 v%d, %s, v%d\nv_exp_f32 v%d, v%d' % (t2, sML, t1, t2, t2))
        A('v_readfirstlane_b32 %s, v%d\nv_readfirstlane_b32 %s, v%d' % (sM, s0b, sML, t1))
        A('v_mul_f32 v%d, v%d, v%d' % (vLS, vLS, t2))
        for i in range(12): A('v_mul_f32 v%d, v%d, v%d' % (vACC + i, vACC + i, t2))
        A('s_branch L_back%d' % n)
    A('''.section .rodata,"a"
.p2align 6
.amdhsa_kernel %s_kernel
.amdhsa_next_free_vgpr 512
.amdhsa_next_free_sgpr 96
.amdhsa_accum_offset 256
.amdhsa_group_segment_fixed_size 0
.amdhsa_kernarg_size 112
.amdhsa_user_sgpr_count 2
.amdhsa_user_sgpr_kernarg_segment_ptr 1
.amdhsa_system_sgpr_workgroup_id_x 1
.amdhsa_float_denorm_mode_32 3
.end_amdhsa_kernel''' % NAME)
    return HEADER + A.text()

if __name__ == '__main__':
    import json
    out = sys.argv[1] if len(sys.argv) > 1 else 'cdna_kernels/%s.s' % NAME
    kw = json.loads(sys.argv[2]) if len(sys.argv) > 2 else {}
    open(out, 'w').write(gen(**kw))
```

```python
import sys
sys.path.insert(0, 'gen')
from asmlib import Asm
NAME = 'adaLN_cond__mha_block_cached__glu_gated_geglu__decode'

HEADER = open('cdna_kernels/%s.s.ref' % NAME).read().split('; Override launch')[0]

WS_EPOCH = 0
WS_M = 0x1000
WS_Q = 0x20000
WS_O = 0x60000
WS_Y = 0xA0000
WS_D = 0xB0000
WS_STAMP = 0x100000
WS_SIZE = 0x200000
L_RED = 0
L_ML = 12288
L_H = 12352
L_Q = 12800
L_O = 13312
L_X = 16384
L_ST = 19456
L_RED2 = 20480
LDS_BYTES = 32768
LOG2E = 0x3FB8AA3B
SCALE = 0x3D93CD3A

def gen(NB=2, kvflags='nt', wflags='nt', diag=False, order='inter', w3pre=0, spin=1 << 21, pad_to=0, pad_q=0, pad_first=0, pad_wg=-1):
    A = Asm()
    sWV = 's3'
    pX, pK, pV, pWQ, pWO, pG, pU = 16, 18, 20, 22, 24, 28, 30
    pDN, pC, pWM, pOUT, pDBG, pWS = 32, 34, 36, 38, 40, 42
    K_SRD, V_SRD, WS_SRD, A_SRD, B_SRD = 44, 48, 52, 56, 60
    sT = [64, 65, 66, 67]
    sH, sS, sKP = 's68', 's69', 's70'
    sM, sML = 's71', 's72'
    sOFF, sCNT, sSPIN = 's73', 's74', 's75'
    sA, sB, sC_, sD = 's76', 's77', 's78', 's79'
    sW = list(range(80, 88))
    sTS = 90
    def sp(i): return 's[%d:%d]' % (i, i + 1)
    def sq(i): return 's[%d:%d]' % (i, i + 3)
    def vq(i, n=4, k='v'): return '%s[%d:%d]' % (k, i, i + n - 1)
    vL, vG, vC, vKV = 0, 1, 2, 3
    vMK = [4, 5, 6, 7]
    vFF, vLG2, vSTAMP, vLS = 8, 9, 10, 11
    vQ = 12
    vACC = 24
    vA0, vA1 = 36, 40
    vT = 44
    vK0 = 96
    assert vK0 + 24 * NB <= 256
    aV0 = 0
    aW0 = 24 * NB
    assert aW0 + 128 <= 256
    T = lambda i: 'v%d' % (vT + i)
    stampn = [0]
    def stamp(idx):
        if diag:
            A('s_memrealtime %s\ns_waitcnt lgkmcnt(0)\nv_writelane_b32 v%d, s%d, %d' % (sp(sTS), vSTAMP, sTS, idx))
    def srd(r, p, nbytes):
        A('s_mov_b32 s%d, s%d\ns_mov_b32 s%d, s%d\ns_mov_b32 s%d, %d\ns_mov_b32 s%d, 0x20000' % (r, p, r + 1, p + 1, r + 2, nbytes, r + 3))
    def enc(r):
        for i in range(4): A('v_bfi_b32 v%d, v%d, s%d, v%d' % (r + i, vFF, sT[i], r + i))
    def chk(acc, r, first):
        for i in range(4):
            if first and i == 0: A('v_xor_b32 %s, s%d, v%d' % (acc, sT[0], r))
            else: A('v_bitop3_b32 %s, v%d, s%d, %s bitop3:0xbe' % (acc, r + i, sT[i], acc))
    lab = [0]
    def poll(issue, regs, acc, execmask=None):
        lab[0] += 1; n = lab[0]
        if execmask is not None: setexec(execmask)
        A('s_mov_b32 %s, 0' % sSPIN)
        A('L_poll%d:' % n)
        issue()
        A('s_add_u32 %s, %s, 1\ns_cmp_gt_u32 %s, %d\ns_cbranch_scc1 L_done' % (sSPIN, sSPIN, sSPIN, spin))
        A('s_waitcnt vmcnt(0)')
        for i, r in enumerate(regs): chk(acc, r, i == 0)
        A('v_and_b32 %s, v%d, %s' % (acc, vFF, acc))
        A('v_cmp_ne_u32 vcc, 0, %s' % acc)
        A('s_cbranch_vccnz L_poll%d' % n)
        for r in regs:
            for i in range(4): A('v_and_b32 v%d, 0xffffff00, v%d' % (r + i, r + i))
    def setexec(m):
        if m == -1: A('s_mov_b64 exec, -1')
        else: A('s_mov_b32 exec_lo, 0x%x\ns_mov_b32 exec_hi, 0x%x' % (m & 0xffffffff, m >> 32))
    def sum_gran(dst, regs):
        for i in range(4):
            A('v_add_f32 v%d, v%d, v%d' % (dst + i, regs[0] + i, regs[1] + i))
        for r in regs[2:]:
            for i in range(4): A('v_add_f32 v%d, v%d, v%d' % (dst + i, dst + i, r + i))
    def rnd4(r, t):
        A('v_cvt_pk_bf16_f32 v%d, v%d, v%d\nv_cvt_pk_bf16_f32 v%d, v%d, v%d' % (t, r, r + 1, t + 1, r + 2, r + 3))
        A('v_lshlrev_b32 v%d, 16, v%d\nv_and_b32 v%d, 0xffff0000, v%d' % (r, t, r + 1, t))
        A('v_lshlrev_b32 v%d, 16, v%d\nv_and_b32 v%d, 0xffff0000, v%d' % (r + 2, t + 1, r + 3, t + 1))
    def rnd1(r):
        A('v_cvt_pk_bf16_f32 v%d, v%d, v%d\nv_lshlrev_b32 v%d, 16, v%d' % (r, r, r, r, r))
    def unpack4(dst, src):
        A('v_lshlrev_b32 v%d, 16, v%d\nv_and_b32 v%d, 0xffff0000, v%d' % (dst, src, dst + 1, src))
        A('v_lshlrev_b32 v%d, 16, v%d\nv_and_b32 v%d, 0xffff0000, v%d' % (dst + 2, src + 1, dst + 3, src + 1))
    def selmfma(acc, sel, breg, alt, first=False):
        a = vA1 if alt else vA0
        for r in range(4): A('v_and_b32 v%d, v%d, v%d' % (a + r, vMK[r], sel))
        A('v_mfma_f32_16x16x32_bf16 %s, %s, %s, %s' % (vq(acc), vq(a), breg, '0' if first else vq(acc)))
    DPP = 'row_mask:0xf bank_mask:0xf'
    def wave_sum(r, t):
        A('v_add_f32_dpp v%d, v%d, v%d quad_perm:[1,0,3,2] %s' % (r, r, r, DPP))
        A('v_add_f32_dpp v%d, v%d, v%d quad_perm:[2,3,0,1] %s' % (r, r, r, DPP))
        A('v_add_f32_dpp v%d, v%d, v%d row_half_mirror %s' % (r, r, r, DPP))
        A('v_add_f32_dpp v%d, v%d, v%d row_ror:8 %s' % (r, r, r, DPP))
        rows_op('v_add_f32', r, t)
    def rows_op(op, r, t):
        A('v_mov_b32 v%d, v%d\nv_permlane16_swap_b32 v%d, v%d\n%s v%d, v%d, v%d' % (t, r, r, t, op, r, r, t))
        A('v_mov_b32 v%d, v%d\nv_permlane32_swap_b32 v%d, v%d\n%s v%d, v%d, v%d' % (t, r, r, t, op, r, r, t))
    def pair_sum(r, t):
        for i in range(4): A('v_mov_b32 v%d, v%d' % (t + i, r + i))
        for i in range(4): A('v_permlane32_swap_b32 v%d, v%d' % (r + i, t + i))
        for i in range(4): A('v_add_f32_dpp v%d, v%d, v%d row_ror:8 %s' % (r + i, t + i, r + i, DPP))
    def red16(dst, base, tmp, vaddr):
        regs = [tmp + 4 * i for i in range(8)]
        for w in range(4):
            A('ds_read_b128 %s, v%d offset:%d' % (vq(regs[2 * w]), vaddr, base + w * 1024))
            A('ds_read_b128 %s, v%d offset:%d' % (vq(regs[2 * w + 1]), vaddr, base + w * 1024 + 640))
        A('s_waitcnt lgkmcnt(0)')
        sum_gran(dst, regs)
    def l1addr(dst, j, t):
        A('v_and_b32 v%d, 1, v%d\nv_bfe_u32 v%d, v%d, 1, 3\nv_lshlrev_b32 v%d, 4, v%d\nv_lshl_add_u32 v%d, v%d, 8, v%d' % (dst, j, t, j, t, t, dst, dst, t))

    A('; @launch grid=(256,1,1) block=(256,1,1) lds=%d' % LDS_BYTES)
    A('.amdgcn_target "amdgcn-amd-amdhsa--gfx950"\n.text\n.globl %s_kernel\n.p2align 8\n.type %s_kernel,@function\n%s_kernel:' % (NAME, NAME, NAME))
    if pad_first: A('s_memrealtime s[92:93]')
    A('s_cmp_ge_u32 s2, 256\ns_cbranch_scc1 L_done')
    A('s_load_dwordx16 s[16:31], s[0:1], 0\ns_load_dwordx8 s[32:39], s[0:1], 64\ns_load_dwordx4 s[40:43], s[0:1], 96')
    A('v_lshrrev_b32 v1, 6, v0\nv_readfirstlane_b32 %s, v1\nv_and_b32 v0, 63, v0' % sWV)
    if diag: A('v_mov_b32 v%d, 0' % vSTAMP)
    A('v_lshrrev_b32 v%d, 3, v0\nv_and_b32 v%d, 7, v0' % (vG, vC))
    A('v_mul_u32_u24 v%d, 384, v%d\nv_lshl_add_u32 v%d, v%d, 4, v%d' % (vKV, vG, vKV, vC, vKV))
    A('v_and_b32 %s, 1, v%d\nv_lshlrev_b32 %s, 4, %s\nv_mov_b32 %s, 0xffff\nv_lshlrev_b32 %s, %s, %s' % (T(0), vC, T(0), T(0), T(1), T(1), T(0), T(1)))
    A('v_lshrrev_b32 %s, 1, v%d' % (T(0), vC))
    for r in range(4):
        A('v_cmp_eq_u32 vcc, %d, %s\nv_cndmask_b32 v%d, 0, %s, vcc' % (r, T(0), vMK[r], T(1)))
    A('v_mov_b32 v%d, 0xff\nv_mov_b32 v%d, 0x%x' % (vFF, vLG2, LOG2E))
    A('s_lshr_b32 %s, s2, 3\ns_and_b32 %s, s2, 7' % (sH, sS))
    A('s_lshl_b32 %s, %s, 2\ns_add_u32 %s, %s, %s\ns_and_b32 %s, %s, 31' % (sKP, sS, sKP, sKP, sH, sKP, sKP))
    A('s_waitcnt lgkmcnt(0)')
    A('s_load_dword s%d, %s, %d' % (sT[0], sp(pWS), WS_EPOCH))
    if (pad_to or pad_q) and not pad_first: A('s_memrealtime s[92:93]')
    def pad(us):
        lab[0] += 1
        A('L_pad%d:\ns_memrealtime s[90:91]\ns_waitcnt lgkmcnt(0)\ns_sub_u32 s90, s90, s92\ns_cmp_lt_u32 s90, %d\ns_cbranch_scc1 L_pad%d' % (lab[0], us * 100, lab[0]))
    stamp(0)
    A('s_mul_i32 %s, %s, 12582912' % (sA, sH))
    for (r, p) in ((K_SRD, pK), (V_SRD, pV)):
        A('s_add_u32 s%d, s%d, %s\ns_addc_u32 s%d, s%d, 0\ns_mov_b32 s%d, 12582912\ns_mov_b32 s%d, 0x20000' % (r, p, sA, r + 1, p + 1, r + 2, r + 3))
    srd(WS_SRD, pWS, WS_SIZE)
    aM = aW0; vCs = vT + 8
    A('s_cmp_ge_u32 s2, 240\ns_cbranch_scc1 L_noMload')
    srd(A_SRD, pC, 1280); srd(B_SRD, pWM, 4915200)
    A('s_and_b32 %s, s2, 3\ns_mul_i32 %s, %s, 160\ns_mul_i32 %s, %s, 40\ns_add_u32 %s, %s, %s' % (sA, sA, sA, sB, sWV, sA, sA, sB))
    A('s_lshl_b32 %s, %s, 1\nv_lshlrev_b32 %s, 1, v%d' % (sB, sA, T(0), vG))
    for t in range(5): A('buffer_load_ushort v%d, %s, %s, %s offen offset:%d' % (vCs + t, T(0), sq(A_SRD), sB, 16 * t))
    A('s_mul_i32 %s, %s, 7680\ns_lshr_b32 %s, s2, 2\ns_lshl_b32 %s, %s, 7\ns_add_u32 %s, %s, %s' % (sA, sA, sB, sB, sB, sA, sA, sB))
    A('v_mul_u32_u24 %s, 7680, v%d\nv_lshl_add_u32 %s, v%d, 4, %s' % (T(1), vG, T(1), vC, T(1)))
    for t in range(5):
        A('buffer_load_dwordx4 %s, %s, %s, %s offen %s' % (vq(aM + 4 * t, 4, 'a'), T(1), sq(B_SRD), sA, wflags))
        if t < 4: A('s_add_u32 %s, %s, 61440' % (sA, sA))
    A('L_noMload:')
    if order == 'inter':
        A('s_lshl_b32 %s, %s, 2\ns_add_u32 %s, %s, %s\ns_mul_i32 %s, %s, 6144' % (sOFF, sS, sOFF, sOFF, sWV, sOFF, sOFF)); STEP = 6144 * 32
    else:
        A('s_mul_i32 %s, %s, 6144\ns_mul_i32 %s, %s, %d\ns_add_u32 %s, %s, %s' % (sOFF, sWV, sA, sS, 256 * 6144, sOFF, sOFF, sA)); STEP = 6144 * 4
    def issueK(b):
        for i in range(6):
            A('buffer_load_dwordx4 %s, v%d, %s, %s offen offset:%d %s' % (vq(vK0 + 24 * b + 4 * i), vKV, sq(K_SRD), sOFF, (i // 3) * 3072 + (i % 3) * 128, kvflags))
    def issueV(b):
        for i in range(6):
            A('buffer_load_dwordx4 %s, v%d, %s, %s offen offset:%d %s' % (vq(aV0 + 24 * b + 4 * i, 4, 'a'), vKV, sq(V_SRD), sOFF, (i // 3) * 3072 + (i % 3) * 128, kvflags))
    def issue_ring():
        for b in range(NB):
            issueK(b); issueV(b); A('s_add_u32 %s, %s, %d' % (sOFF, sOFF, STEP))
    def tags():
        A('s_waitcnt lgkmcnt(0)\ns_add_u32 s%d, s%d, 0x9e3779b9' % (sT[0], sT[0]))
        for i in range(1, 4): A('s_lshr_b32 s%d, s%d, %d' % (sT[i], sT[0], 8 * i))
    def stageM(younger):
        lab[0] += 1; n = lab[0]
        A('s_cmp_ge_u32 s2, 240\ns_cbranch_scc1 L_noM%d' % n)
        A('s_waitcnt vmcnt(%d)' % min(63, younger + 5))
        for t in range(5): A('v_lshlrev_b32 v%d, 16, v%d' % (vCs + t, vCs + t))
        for t in range(5): A('v_mul_f32 %s, 0x%x, v%d' % (T(t), LOG2E | 0x80000000, vCs + t))
        for t in range(5): A('v_exp_f32 %s, %s' % (T(t), T(t)))
        for t in range(5): A('v_add_f32 %s, 1.0, %s' % (T(t), T(t)))
        for t in range(5): A('v_rcp_f32 %s, %s' % (T(t), T(t)))
        for t in range(5): A('v_mul_f32 v%d, v%d, %s' % (vCs + t, vCs + t, T(t)))
        for t in range(5): A('v_cvt_pk_bf16_f32 v%d, v%d, v%d' % (vCs + t, vCs + t, vCs + t))
        A('s_waitcnt vmcnt(%d)' % younger)
        for t in range(5): selmfma(vACC, vCs + t, vq(aM + 4 * t, 4, 'a'), t & 1, t == 0)
        A('v_lshlrev_b32 %s, 4, v0\ns_lshl_b32 %s, %s, 10\nv_add_u32 %s, %s, %s' % (T(0), sA, sWV, T(0), sA, T(0)))
        A('ds_write_b128 %s, %s offset:%d\ns_waitcnt lgkmcnt(0)\ns_barrier' % (T(0), vq(vACC), L_RED))
        return n
    A('s_cmp_eq_u32 %s, 3\ns_cbranch_scc1 L_ctrl' % sWV)
    aWQ = aW0 + 20
    srd(A_SRD, pWQ, 7864320)
    A('s_mul_i32 %s, %s, %d\ns_mul_i32 %s, %s, 384\ns_add_u32 %s, %s, %s\ns_lshl_b32 %s, %s, 7\ns_add_u32 %s, %s, %s' % (sA, sS, 80 * 12288, sB, sH, sA, sA, sB, sB, sWV, sA, sA, sB))
    A('v_mul_u32_u24 %s, 12288, v%d\nv_lshl_add_u32 %s, v%d, 4, %s' % (T(2), vG, T(2), vC, T(2)))
    for t in range(10):
        A('buffer_load_dwordx4 %s, %s, %s, %s offen %s' % (vq(aWQ + 4 * t, 4, 'a'), T(2), sq(A_SRD), sA, wflags))
        if t < 9: A('s_add_u32 %s, %s, 98304' % (sA, sA))
    issue_ring()
    tags()
    n = stageM(10 + 12 * NB)
    A('L_noM%d:' % n)
    stamp(1)
    A('s_barrier')
    stamp(2)
    A('v_lshlrev_b32 %s, 2, v%d' % (T(0), vG))
    for t in range(10): A('ds_read_b32 %s, %s offset:%d' % (T(1 + t), T(0), L_H + 32 * t))
    A('s_waitcnt vmcnt(%d) lgkmcnt(0)' % (12 * NB))
    for t in range(10): selmfma(vACC, vT + 1 + t, vq(aWQ + 4 * t, 4, 'a'), t & 1, t == 0)
    A('v_lshrrev_b32 %s, 4, v0\nv_lshl_add_u32 %s, v%d, 1, %s\nv_lshlrev_b32 %s, 4, %s' % (T(0), T(0), vC, T(0), T(0), T(0)))
    A('s_lshl_b32 %s, s2, 10\ns_lshl_b32 %s, %s, 8\ns_add_u32 %s, %s, %s\ns_add_u32 %s, %s, %d' % (sA, sB, sWV, sA, sA, sB, sA, sA, WS_Q))
    pair_sum(vACC, vT + 4)
    enc(vACC)
    setexec(0x00ff00ff)
    A('buffer_store_dwordx4 %s, %s, %s, %s offen sc1' % (vq(vACC), T(0), sq(WS_SRD), sA))
    setexec(-1)
    A('s_branch L_qwait')
    A('L_ctrl:')
    srd(A_SRD, pX, 1280)
    vX0, vX1, vXs = vT + 16, vT + 20, vT + 24
    vBIG = 224
    A('v_lshlrev_b32 %s, 4, v0' % T(3))
    A('buffer_load_dwordx4 %s, %s, %s, 0 offen' % (vq(vX0), T(3), sq(A_SRD)))
    A('buffer_load_dwordx4 %s, %s, %s, 0 offen offset:1024' % (vq(vX1), T(3), sq(A_SRD)))
    A('v_lshlrev_b32 %s, 3, v0\ns_mul_i32 %s, %s, 160' % (T(4), sA, sS))
    A('buffer_load_dwordx2 %s, %s, %s, %s offen' % (vq(vXs, 2), T(4), sq(A_SRD), sA))
    if w3pre: issue_ring()
    tags()
    n = stageM(3 + (12 * NB if w3pre else 0))
    l1addr(vT + 0, 0, vT + 1)
    A('v_lshlrev_b32 %s, 4, v0' % T(3))
    red16(vT + 4, L_RED, vBIG, vT + 0)
    enc(vT + 4)
    A('s_and_b32 %s, s2, 3\ns_mul_i32 %s, %s, 15360\ns_lshr_b32 %s, s2, 2\ns_lshl_b32 %s, %s, 8\ns_add_u32 %s, %s, %s\ns_add_u32 %s, %s, %d' % (sA, sA, sA, sB, sB, sB, sA, sA, sB, sA, sA, WS_M))
    setexec(0xffff)
    A('buffer_store_dwordx4 %s, %s, %s, %s offen sc1' % (vq(vT + 4), T(3), sq(WS_SRD), sA))
    setexec(-1)
    A('s_waitcnt vmcnt(%d)\ns_branch L_xok' % (1 + 12 * NB if w3pre else 1))
    A('L_noM%d:' % n)
    A('s_waitcnt vmcnt(%d)' % (12 * NB if w3pre else 0))
    A('L_xok:')
    stamp(1)
    vU = vBIG
    unpack4(vU, vX0); unpack4(vU + 4, vX0 + 2); unpack4(vU + 8, vX1); unpack4(vU + 12, vX1 + 2)
    A('v_add_f32 %s, v%d, v%d' % (T(8), vU, vU + 1))
    for i in range(2, 16): A('v_add_f32 %s, %s, v%d' % (T(8), T(8), vU + i))
    wave_sum(vT + 8, vT + 9)
    A('v_mul_f32 %s, 0x%x, %s' % (T(8), 0x3ACCCCCD, T(8)))
    for i in range(16): A('v_sub_f32 v%d, v%d, %s' % (vU + i, vU + i, T(8)))
    A('v_mul_f32 %s, v%d, v%d' % (T(10), vU, vU))
    for i in range(1, 8): A('v_fmac_f32 %s, v%d, v%d' % (T(10), vU + i, vU + i))
    setexec(0xffff)
    for i in range(8, 16): A('v_fmac_f32 %s, v%d, v%d' % (T(10), vU + i, vU + i))
    setexec(-1)
    wave_sum(vT + 10, vT + 9)
    def finish_stats(m, v):
        A('v_mul_f32 v%d, 0x%x, v%d' % (v, 0x3ACCCCCD, v))
        rnd1(m); rnd1(v)
        A('v_add_f32 v%d, 0x%x, v%d' % (v, 0x3727C5AC, v))
        rnd1(v)
        A('v_sqrt_f32 v%d, v%d' % (v, v))
        rnd1(v)
        A('v_rcp_f32 v%d, v%d' % (v, v))
    finish_stats(vT + 8, vT + 10)
    def normalize(x, m, r, t):
        for i in range(4): A('v_sub_f32 v%d, v%d, v%d' % (x + i, x + i, m))
        rnd4(x, t)
        for i in range(4): A('v_mul_f32 v%d, v%d, v%d' % (x + i, x + i, r))
        rnd4(x, t)
    vN = vT + 12
    unpack4(vN, vXs)
    normalize(vN, vT + 8, vT + 10, vT + 0)
    A('v_and_b32 %s, 31, v0\nv_lshrrev_b32 %s, 5, v0\nv_mul_u32_u24 %s, 2560, %s\nv_lshl_add_u32 %s, %s, 4, %s' % (T(2), T(3), T(3), T(3), T(2), T(2), T(3)))
    A('s_mul_i32 %s, %s, 320\ns_add_u32 %s, %s, %d' % (sA, sS, sA, sA, WS_M))
    A('s_add_u32 %s, %s, 15360\ns_add_u32 %s, %s, 15360\ns_add_u32 %s, %s, 15360' % (sB, sA, sC_, sB, sD, sC_))
    def iss():
        for i, s in enumerate((sA, sB, sC_, sD)):
            A('buffer_load_dwordx4 %s, %s, %s, %s offen sc1' % (vq(vBIG + 4 * i), T(2), sq(WS_SRD), s))
    poll(iss, [vBIG + 4 * i for i in range(4)], T(3), 0x000fffff000fffff)
    setexec(-1)
    vS_ = vT + 4
    sum_gran(vS_, [vBIG + 4 * i for i in range(4)])
    rnd4(vS_, vT + 0)
    vCa = vT + 16
    for i in range(4): A('v_mov_b32 v%d, v%d' % (vCa + i, vS_ + i))
    for i in range(4): A('v_permlane32_swap_b32 v%d, v%d' % (vS_ + i, vCa + i))
    def modulate(x, cc, ss, t):
        for i in range(4): A('v_mul_f32 v%d, v%d, v%d' % (x + i, x + i, cc + i))
        rnd4(x, t)
        for i in range(4): A('v_add_f32 v%d, v%d, v%d' % (x + i, x + i, ss + i))
        for i in range(4): A('v_cvt_pk_bf16_f32 v%d, v%d, v%d' % (x + i, x + i, x + i))
    for i in range(4): A('v_add_f32 v%d, 1.0, v%d' % (vCa + i, vCa + i))
    rnd4(vCa, vT + 0)
    modulate(vN, vCa, vS_, vT + 0)
    A('v_lshlrev_b32 %s, 4, v0' % T(3))
    setexec(0xfffff)
    A('ds_write_b128 %s, %s offset:%d' % (T(3), vq(vN), L_H))
    setexec(-1)
    A('s_waitcnt lgkmcnt(0)\ns_barrier')
    stamp(2)
    A('s_lshl_b32 %s, %s, 13\ns_add_u32 %s, %s, %d\ns_add_u32 %s, %s, 4096' % (sA, sH, sA, sA, WS_Q, sB, sA))
    def iss():
        for i in range(8):
            A('buffer_load_dwordx4 %s, %s, %s, %s offen offset:%d sc1' % (vq(vBIG + 4 * i), T(3), sq(WS_SRD), sA if i < 4 else sB, (i % 4) * 1024))
    poll(iss, [vBIG + 4 * i for i in range(8)], T(2), (1 << 48) - 1)
    sum_gran(vS_, [vBIG + 4 * i for i in range(8)])
    A('v_cvt_pk_bf16_f32 %s, v%d, v%d\nv_cvt_pk_bf16_f32 %s, v%d, v%d' % (T(0), vS_, vS_ + 1, T(1), vS_ + 2, vS_ + 3))
    A('v_lshlrev_b32 %s, 3, v0\nds_write_b64 %s, %s offset:%d' % (T(2), T(2), vq(vT, 2), L_Q))
    setexec(-1)
    if not w3pre: issue_ring()
    A('s_waitcnt lgkmcnt(0)')
    A('L_qwait:')
    A('s_barrier')
    A('v_lshlrev_b32 %s, 4, v%d' % (T(0), vC))
    for i in range(3): A('ds_read_b128 %s, %s offset:%d' % (vq(vQ + 4 * i), T(0), L_Q + 128 * i))
    for i in range(12): A('v_mov_b32 v%d, 0' % (vACC + i))
    A('v_mov_b32 v%d, 0\ns_mov_b32 %s, 0xff800000\ns_mov_b32 %s, 0xff800000' % (vLS, sM, sML))
    A('s_waitcnt lgkmcnt(0)')
    stamp(3)
    if pad_q: pad(pad_q)
    slow = []
    def tile(b, nK, nV, reissue):
        lab[0] += 1; n = lab[0]
        kb = vK0 + 24 * b
        s0, s1, s0b, s1b = vT, vT + 1, vT + 2, vT + 3
        A('s_waitcnt vmcnt(%d)' % nK)
        for i in range(3):
            for j in range(4):
                for gk in range(2):
                    d = (s0, s1)[gk] if (j & 1) == 0 else (s0b, s1b)[gk]
                    k = kb + 12 * gk + 4 * i + j
                    if i == 0 and j < 2: A('v_dot2_f32_bf16 v%d, v%d, v%d, 0' % (d, k, vQ + 4 * i + j))
                    else: A('v_dot2_f32_bf16 v%d, v%d, v%d, v%d' % (d, k, vQ + 4 * i + j, d))
        if reissue: issueK(b)
        A('v_add_f32 v%d, v%d, v%d\nv_add_f32 v%d, v%d, v%d' % (s0, s0, s0b, s1, s1, s1b))
        for pat in ('quad_perm:[1,0,3,2]', 'quad_perm:[2,3,0,1]', 'row_half_mirror'):
            A('v_add_f32_dpp v%d, v%d, v%d %s %s' % (s0, s0, s0, pat, DPP))
            A('v_add_f32_dpp v%d, v%d, v%d %s %s' % (s1, s1, s1, pat, DPP))
        A('v_cvt_pk_bf16_f32 v%d, v%d, v%d' % (s0b, s0, s1))
        A('v_lshlrev_b32 v%d, 16, v%d\nv_and_b32 v%d, 0xffff0000, v%d' % (s0, s0b, s1, s0b))
        A('v_mul_f32 v%d, 0x%x, v%d\nv_mul_f32 v%d, 0x%x, v%d' % (s0, SCALE, s0, s1, SCALE, s1))
        A('v_cvt_pk_bf16_f32 v%d, v%d, v%d' % (s0b, s0, s1))
        A('v_lshlrev_b32 v%d, 16, v%d\nv_and_b32 v%d, 0xffff0000, v%d' % (s0, s0b, s1, s0b))
        A('v_max_f32 v%d, v%d, v%d' % (s0b, s0, s1))
        A('v_cmp_lt_f32 vcc, %s, v%d' % (sM, s0b))
        A('s_cbranch_vccnz L_slow%d' % n)
        A('L_back%d:' % n)
        A('v_fma_f32 v%d, v%d, v%d, -%s\nv_fma_f32 v%d, v%d, v%d, -%s' % (s0, s0, vLG2, sML, s1, s1, vLG2, sML))
        A('v_exp_f32 v%d, v%d\nv_exp_f32 v%d, v%d' % (s0, s0, s1, s1))
        A('v_add_f32 v%d, v%d, v%d\nv_cvt_pk_bf16_f32 v%d, v%d, v%d' % (vLS, vLS, s0, s0, s0, s0))
        A('v_add_f32 v%d, v%d, v%d\nv_cvt_pk_bf16_f32 v%d, v%d, v%d' % (vLS, vLS, s1, s1, s1, s1))
        for r in range(4): A('v_and_b32 v%d, v%d, v%d' % (vA0 + r, vMK[r], s0))
        for r in range(4): A('v_and_b32 v%d, v%d, v%d' % (vA1 + r, vMK[r], s1))
        A('s_waitcnt vmcnt(%d)' % nV)
        for gk in range(2):
            for i in range(3):
                A('v_mfma_f32_16x16x32_bf16 %s, %s, %s, %s' % (vq(vACC + 4 * i), vq((vA0, vA1)[gk]), vq(aV0 + 24 * b + 12 * gk + 4 * i, 4, 'a'), vq(vACC + 4 * i)))
        if reissue:
            issueV(b); A('s_add_u32 %s, %s, %d' % (sOFF, sOFF, STEP))
        slow.append(n)
    assert 64 % NB == 0
    A('s_mov_b32 %s, %d' % (sCNT, 64 // NB - 1))
    A('L_loop:')
    for b in range(NB): tile(b, 12 * NB - 6, 12 * NB - 6, True)
    A('s_sub_u32 %s, %s, 1\ns_cmp_lg_u32 %s, 0\ns_cbranch_scc1 L_loop' % (sCNT, sCNT, sCNT))
    for b in range(NB): tile(b, 12 * (NB - b) - 6, 12 * (NB - b - 1), False)
    stamp(4)
    A('s_cmp_lt_u32 %s, 10\ns_cbranch_scc0 L_notWload' % sKP)
    srd(A_SRD, pWO, 7864320)
    A('s_lshl_b32 %s, %s, 2\ns_add_u32 %s, %s, %s\ns_mul_i32 %s, %s, %d\ns_lshl_b32 %s, %s, 7\ns_add_u32 %s, %s, %s' % (sA, sS, sA, sA, sWV, sA, sA, 192 * 1280, sB, sKP, sA, sA, sB))
    A('v_mul_u32_u24 %s, %d, v%d\nv_lshl_add_u32 %s, v%d, 4, %s' % (T(8), 24 * 1280, vG, T(8), vC, T(8)))
    for t in range(24):
        A('buffer_load_dwordx4 %s, %s, %s, %s offen offset:%d %s' % (vq(aW0 + 4 * t, 4, 'a'), T(8), sq(A_SRD), sA, (t % 4) * 1280, wflags))
        if t % 4 == 3 and t < 23: A('s_add_u32 %s, %s, 5120' % (sA, sA))
    A('s_branch L_wloaded')
    A('L_notWload:')
    A('s_cmp_lt_u32 %s, 16\ns_cbranch_scc0 L_wloaded' % sKP)
    sF = 's88'
    A('s_mul_i32 %s, %s, 6\ns_add_u32 %s, %s, %s\ns_sub_u32 %s, %s, 10' % (sF, sS, sF, sF, sKP, sF, sF))
    A('v_cmp_gt_u32 vcc, 4, v%d\nv_mov_b32 %s, s%d\nv_mov_b32 %s, s%d\nv_cndmask_b32 %s, %s, %s, vcc' % (vC, T(8), pU, T(9), pG, T(8), T(8), T(9)))
    A('v_mov_b32 %s, s%d\nv_mov_b32 %s, s%d\nv_cndmask_b32 %s, %s, %s, vcc' % (T(9), pU + 1, T(10), pG + 1, T(9), T(9), T(10)))
    A('s_mul_i32 %s, %s, %d\ns_lshl_b32 %s, %s, 6\ns_add_u32 %s, %s, %s' % (sA, sWV, 160 * 3072, sB, sF, sA, sA, sB))
    A('v_mul_u32_u24 %s, %d, v%d\nv_and_b32 %s, 3, v%d\nv_lshl_add_u32 %s, %s, 4, %s\nv_add_u32 %s, %s, %s\nv_mov_b32 %s, 0' % (T(10), 20 * 3072, vG, T(11), vC, T(10), T(11), T(10), T(10), sA, T(10), T(11)))
    A('v_lshl_add_u64 %s, %s, 0, %s' % (vq(vT + 8, 2), vq(vT + 10, 2), vq(vT + 8, 2)))
    A('s_mov_b32 %s, 6144\ns_mov_b32 %s, 0' % (sA, sB))
    for t in range(20):
        A('global_load_dwordx4 %s, %s, off offset:%d %s' % (vq(aW0 + 4 * t, 4, 'a'), vq(vT + 8, 2), (t % 2) * 3072, wflags))
        if t % 2 == 1 and t < 19: A('v_lshl_add_u64 %s, %s, 0, s[76:77]' % (vq(vT + 8, 2), vq(vT + 8, 2)))
    srd(A_SRD, pDN, 1966080)
    A('s_mul_i32 %s, %s, %d\ns_lshl_b32 %s, %s, 7\ns_add_u32 %s, %s, %s' % (sA, sF, 32 * 1280, sB, sWV, sA, sA, sB))
    A('v_mul_u32_u24 %s, 5120, v%d\nv_lshl_add_u32 %s, v%d, 4, %s' % (T(8), vG, T(8), vC, T(8)))
    for cbk in range(3):
        if cbk == 2: A('s_cmp_ge_u32 %s, 2\ns_cbranch_scc1 L_wloaded' % sWV)
        for t in range(4):
            A('buffer_load_dwordx4 %s, %s, %s, %s offen offset:%d %s' % (vq(aW0 + 80 + 16 * cbk + 4 * t, 4, 'a'), T(8), sq(A_SRD), sA, t * 1280, wflags))
        if cbk < 2: A('s_add_u32 %s, %s, 512' % (sA, sA))
    A('L_wloaded:')
    A('v_add_f32_dpp v%d, v%d, v%d row_ror:8 %s' % (vLS, vLS, vLS, DPP))
    rows_op('v_add_f32', vLS, vT + 0)
    A('v_mov_b32 %s, %s\nv_mov_b32 %s, v%d' % (T(0), sM, T(1), vLS))
    A('s_mul_i32 %s, %s, 3072\nv_lshl_add_u32 %s, v0, 4, %s\ns_lshl_b32 %s, %s, 3\nv_mov_b32 %s, %s' % (sA, sWV, T(2), sA, sB, sWV, T(3), sB))
    for i in range(3): A('ds_write_b128 %s, %s offset:%d' % (T(2), vq(vACC + 4 * i), L_RED + 1024 * i))
    A('ds_write_b64 %s, %s offset:%d' % (T(3), vq(vT, 2), L_ML))
    A('s_waitcnt lgkmcnt(0)\ns_barrier')
    A('s_cmp_lg_u32 %s, 0\ns_cbranch_scc1 L_opub' % sWV)
    vML = vT + 4
    A('v_mov_b32 %s, 0' % T(0))
    A('ds_read_b128 %s, %s offset:%d\nds_read_b128 %s, %s offset:%d' % (vq(vML), T(0), L_ML, vq(vML + 4), T(0), L_ML + 16))
    l1addr(vT + 1, 0, vT + 2)
    A('v_lshrrev_b32 %s, 4, v0\nv_min_u32 %s, 2, %s\nv_lshl_add_u32 %s, %s, 10, %s' % (T(2), T(2), T(2), T(1), T(2), T(1)))
    G8 = [vK0 + 4 * i for i in range(8)]
    for w in range(4):
        A('ds_read_b128 %s, %s offset:%d' % (vq(G8[2 * w]), T(1), L_RED + w * 3072))
        A('ds_read_b128 %s, %s offset:%d' % (vq(G8[2 * w + 1]), T(1), L_RED + w * 3072 + 640))
    A('s_waitcnt lgkmcnt(8)')
    vMx, vLx = vT + 12, vT + 13
    A('v_max3_f32 v%d, v%d, v%d, v%d\nv_max_f32 v%d, v%d, v%d' % (vMx, vML, vML + 2, vML + 4, vMx, vMx, vML + 6))
    A('v_mul_f32 %s, v%d, v%d' % (T(14), vLG2, vMx))
    for w in range(4): A('v_mul_f32 v%d, v%d, v%d' % (vML + 2 * w, vLG2, vML + 2 * w))
    for w in range(4): A('v_sub_f32 v%d, v%d, %s' % (vML + 2 * w, vML + 2 * w, T(14)))
    for w in range(4): A('v_exp_f32 v%d, v%d' % (vML + 2 * w, vML + 2 * w))
    A('v_mul_f32 v%d, v%d, v%d' % (vLx, vML, vML + 1))
    for w in range(1, 4): A('v_fmac_f32 v%d, v%d, v%d' % (vLx, vML + 2 * w, vML + 2 * w + 1))
    A('s_waitcnt lgkmcnt(0)')
    vO = vT + 16
    for w in range(4):
        for i in range(4): A('v_add_f32 v%d, v%d, v%d' % (G8[2 * w] + i, G8[2 * w] + i, G8[2 * w + 1] + i))
    for i in range(4): A('v_mul_f32 v%d, v%d, v%d' % (vO + i, G8[0] + i, vML))
    for w in range(1, 4):
        for i in range(4): A('v_fmac_f32 v%d, v%d, v%d' % (vO + i, G8[2 * w] + i, vML + 2 * w))
    A('v_cmp_eq_u32 vcc, 48, v0\nv_cndmask_b32 v%d, v%d, v%d, vcc\nv_cndmask_b32 v%d, v%d, v%d, vcc' % (vO, vO, vMx, vO + 1, vO + 1, vLx))
    enc(vO)
    A('v_lshlrev_b32 %s, 4, v0\ns_lshl_b32 %s, s2, 10\ns_add_u32 %s, %s, %d' % (T(0), sA, sA, sA, WS_O))
    setexec((1 << 49) - 1)
    A('buffer_store_dwordx4 %s, %s, %s, %s offen sc1' % (vq(vO), T(0), sq(WS_SRD), sA))
    setexec(-1)
    A('L_opub:')
    stamp(5)
    A('s_cmp_lt_u32 %s, 10\ns_cbranch_scc1 L_roleW' % sKP)
    A('s_cmp_lt_u32 %s, 16\ns_cbranch_scc1 L_roleF' % sKP)
    A('s_cmp_eq_u32 %s, 16\ns_cbranch_scc1 L_roleR' % sKP)
    A('s_cmp_eq_u32 %s, 17\ns_cbranch_scc0 L_fin\ns_cmp_lt_u32 %s, 2\ns_cbranch_scc1 L_roleR\ns_branch L_fin' % (sKP, sS))
    G9 = [vK0 + 4 * i for i in range(12)] if NB >= 2 else None
    assert NB >= 2
    A('L_roleW:')
    A('s_lshl_b32 %s, %s, 2\ns_add_u32 %s, %s, %s\ns_lshl_b32 %s, %s, 13\ns_add_u32 %s, %s, %d\ns_add_u32 %s, %s, 4096' % (sA, sS, sA, sA, sWV, sA, sA, sA, sA, WS_O, sB, sA))
    A('v_min_u32 %s, 47, v0\nv_lshlrev_b32 %s, 4, %s\nv_lshlrev_b32 %s, 10, v%d' % (T(0), T(0), T(0), T(1), vC))
    def iss():
        A('buffer_load_dwordx4 %s, %s, %s, %s offen offset:768 sc1' % (vq(G9[8]), T(1), sq(WS_SRD), sA))
        for i in range(8):
            A('buffer_load_dwordx4 %s, %s, %s, %s offen offset:%d sc1' % (vq(G9[i]), T(0), sq(WS_SRD), sA if i < 4 else sB, (i % 4) * 1024))
    poll(iss, G9[:9], T(2))
    stamp(6)
    m_, l_ = G9[8], G9[8] + 1
    A('v_max_f32_dpp %s, v%d, v%d quad_perm:[1,0,3,2] %s' % (T(2), m_, m_, DPP))
    A('v_max_f32_dpp %s, %s, %s quad_perm:[2,3,0,1] %s' % (T(2), T(2), T(2), DPP))
    A('v_max_f32_dpp %s, %s, %s row_half_mirror %s' % (T(2), T(2), T(2), DPP))
    A('v_mul_f32 v%d, v%d, v%d\nv_mul_f32 %s, v%d, %s\nv_sub_f32 v%d, v%d, %s\nv_exp_f32 v%d, v%d' % (m_, vLG2, m_, T(2), vLG2, T(2), m_, m_, T(2), m_, m_))
    A('v_mul_f32 v%d, v%d, v%d' % (l_, l_, m_))
    for pat in ('quad_perm:[1,0,3,2]', 'quad_perm:[2,3,0,1]', 'row_half_mirror'):
        A('v_add_f32_dpp v%d, v%d, v%d %s %s' % (l_, l_, l_, pat, DPP))
    A('v_rcp_f32 v%d, v%d\nv_mul_f32 v%d, v%d, v%d' % (l_, l_, m_, m_, l_))
    for i in range(8): A('v_readlane_b32 s%d, v%d, %d' % (sW[i], m_, i))
    for i in range(4): A('v_mul_f32 v%d, s%d, v%d' % (vO + i, sW[0], G9[0] + i))
    for s_ in range(1, 8):
        for i in range(4): A('v_fmac_f32 v%d, s%d, v%d' % (vO + i, sW[s_], G9[s_] + i))
    for i in range(4): A('v_cvt_pk_bf16_f32 v%d, v%d, v%d' % (vO + i, vO + i, vO + i))
    A('s_mul_i32 %s, %s, 768\nv_add_u32 %s, %s, %s' % (sA, sWV, T(0), sA, T(0)))
    A('ds_write_b128 %s, %s offset:%d' % (T(0), vq(vO), L_O))
    A('v_mul_u32_u24 %s, 96, v%d\nv_add_u32 %s, %s, %s\ns_waitcnt lgkmcnt(0)' % (T(1), vG, T(1), sA, T(1)))
    for q_ in range(6): A('ds_read_b128 %s, %s offset:%d' % (vq(vK0 + 4 * q_), T(1), L_O + 16 * q_))
    A('s_waitcnt lgkmcnt(0)')
    for t in range(24): selmfma(vACC, vK0 + t, vq(aW0 + 4 * t, 4, 'a'), t & 1, t == 0)
    A('v_lshlrev_b32 %s, 4, v0\ns_lshl_b32 %s, %s, 10\nv_add_u32 %s, %s, %s' % (T(0), sA, sWV, T(2), sA, T(0)))
    l1addr(vT + 1, 0, vT + 3)
    A('ds_write_b128 %s, %s offset:%d\ns_waitcnt lgkmcnt(0)\ns_barrier' % (T(2), vq(vACC), L_RED2))
    A('s_cmp_lg_u32 %s, 0\ns_cbranch_scc1 L_fin' % sWV)
    red16(vO, L_RED2, vK0, vT + 1)
    enc(vO)
    A('s_mul_i32 %s, %s, 2560\ns_lshl_b32 %s, %s, 8\ns_add_u32 %s, %s, %s\ns_add_u32 %s, %s, %d' % (sA, sS, sB, sKP, sA, sA, sB, sA, sA, WS_Y))
    setexec(0xffff)
    A('buffer_store_dwordx4 %s, %s, %s, %s offen sc1' % (vq(vO), T(0), sq(WS_SRD), sA))
    setexec(-1)
    stamp(7)
    A('s_branch L_fin')
    def gather_mod(dst, which, voff, soff_cols, mask, tmpregs):
        A('s_add_u32 %s, %s, %d' % (sA, soff_cols, WS_M + which * 2560))
        A('s_add_u32 %s, %s, 15360\ns_add_u32 %s, %s, 15360\ns_add_u32 %s, %s, 15360' % (sB, sA, sC_, sB, sD, sC_))
        def iss():
            for i, s in enumerate((sA, sB, sC_, sD)):
                A('buffer_load_dwordx4 %s, %s, %s, %s offen sc1' % (vq(tmpregs[i]), voff, sq(WS_SRD), s))
        poll(iss, tmpregs[:4], T(2), mask)
        sum_gran(dst, tmpregs[:4])
        rnd4(dst, vT + 2)
    def gather_y(dst, voff, soff_cols, mask, tmpregs):
        A('s_add_u32 %s, %s, %d\ns_add_u32 %s, %s, 5120\ns_add_u32 %s, %s, 5120\ns_add_u32 %s, %s, 5120' % (sA, soff_cols, WS_Y, sB, sA, sC_, sB, sD, sC_))
        def iss():
            for i in range(8):
                A('buffer_load_dwordx4 %s, %s, %s, %s offen offset:%d sc1' % (vq(tmpregs[i]), voff, sq(WS_SRD), (sA, sB, sC_, sD)[i // 2], (i % 2) * 2560))
        poll(iss, tmpregs[:8], T(2), mask)
        stamp(6)
        sum_gran(dst, tmpregs[:8])
        rnd4(dst, vT + 2)
    def resid(x, g_, a_, t):
        for i in range(4): A('v_mul_f32 v%d, v%d, v%d' % (a_ + i, a_ + i, g_ + i))
        rnd4(a_, t)
        for i in range(4): A('v_add_f32 v%d, v%d, v%d' % (x + i, x + i, a_ + i))
    vGA, vSB, vCB, vXX, vAA = vT + 8, vT + 12, vT + 16, vT + 20, vT + 24
    sCOL = 's89'
    A('L_roleF:')
    M40 = (1 << 40) - 1
    srd(B_SRD, pX, 1280)
    A('s_mul_i32 %s, %s, 640\ns_mul_i32 %s, %s, 320' % (sCOL, sWV, sA, sWV))
    A('v_lshlrev_b32 %s, 4, v0\nv_lshlrev_b32 %s, 3, v0' % (T(0), T(1)))
    A('buffer_load_dwordx2 %s, %s, %s, %s offen' % (vq(vAA, 2), T(1), sq(B_SRD), sA))
    for i in range(4): A('v_mov_b32 v%d, 0' % (vXX + i))
    gather_mod(vGA, 2, T(0), sCOL, M40, G9)
    gather_mod(vSB, 3, T(0), sCOL, M40, G9)
    gather_mod(vCB, 4, T(0), sCOL, M40, G9)
    unpack4(vXX, vAA)
    for i in range(4): A('v_add_f32 v%d, 1.0, v%d' % (vCB + i, vCB + i))
    rnd4(vCB, vT + 2)
    gather_y(vAA, T(0), sCOL, M40, G9)
    resid(vXX, vGA, vAA, vT + 2)
    rnd4(vXX, vT + 2)
    setexec(-1)
    A('v_add_f32 %s, v%d, v%d\nv_add_f32 %s, v%d, v%d\nv_add_f32 %s, %s, %s' % (T(4), vXX, vXX + 1, T(5), vXX + 2, vXX + 3, T(4), T(4), T(5)))
    wave_sum(vT + 4, vT + 5)
    A('v_mul_f32 %s, 0x%x, %s\nv_mov_b32 %s, 0' % (T(4), 0x3BCCCCCD, T(4), T(5)))
    setexec(M40)
    for i in range(4): A('v_sub_f32 v%d, v%d, %s' % (vAA + i, vXX + i, T(4)))
    for i in range(4): A('v_fmac_f32 %s, v%d, v%d' % (T(5), vAA + i, vAA + i))
    setexec(-1)
    wave_sum(vT + 5, vT + 6)
    A('s_lshl_b32 %s, %s, 3\nv_mov_b32 %s, %s\nds_write_b64 %s, %s offset:%d' % (sA, sWV, T(6), sA, T(6), vq(vT + 4, 2), L_ST))
    A('v_mov_b32 %s, 0\ns_waitcnt lgkmcnt(0)\ns_barrier' % T(6))
    A('ds_read_b128 %s, %s offset:%d\nds_read_b128 %s, %s offset:%d\ns_waitcnt lgkmcnt(0)' % (vq(G9[0]), T(6), L_ST, vq(G9[1]), T(6), L_ST + 16))
    mu = [G9[0], G9[0] + 2, G9[1], G9[1] + 2]
    A('v_add_f32 %s, v%d, v%d\nv_add_f32 %s, v%d, v%d\nv_add_f32 %s, %s, %s\nv_mul_f32 %s, 0x3e800000, %s' % (T(4), mu[0], mu[1], T(5), mu[2], mu[3], T(4), T(4), T(5), T(4), T(4)))
    for w in range(4): A('v_sub_f32 v%d, v%d, %s' % (mu[w], mu[w], T(4)))
    A('v_mul_f32 %s, v%d, v%d' % (T(5), mu[0], mu[0]))
    for w in range(1, 4): A('v_fmac_f32 %s, v%d, v%d' % (T(5), mu[w], mu[w]))
    A('v_mul_f32 %s, 0x43200000, %s' % (T(5), T(5)))
    for w in range(4): A('v_add_f32 %s, %s, v%d' % (T(5), T(5), mu[w] + 1))
    finish_stats(vT + 4, vT + 5)
    normalize(vXX, vT + 4, vT + 5, vT + 2)
    modulate(vXX, vCB, vSB, vT + 2)
    A('v_add_u32 %s, %s, %s' % (T(1), sCOL, T(0)))
    setexec(M40)
    A('ds_write_b128 %s, %s offset:%d' % (T(1), vq(vXX), L_X))
    setexec(-1)
    A('v_mul_u32_u24 %s, 80, v%d\nv_add_u32 %s, %s, %s\ns_waitcnt lgkmcnt(0)' % (T(1), vG, T(1), sCOL, T(1)))
    for q_ in range(5): A('ds_read_b128 %s, %s offset:%d' % (vq(vK0 + 4 * q_), T(1), L_X + 16 * q_))
    A('s_waitcnt lgkmcnt(0)')
    for t in range(20): selmfma(vACC, vK0 + t, vq(aW0 + 4 * t, 4, 'a'), t & 1, t == 0)
    A('s_lshl_b32 %s, %s, 10\nv_add_u32 %s, %s, %s' % (sA, sWV, T(2), sA, T(0)))
    l1addr(vT + 1, vG, vT + 3)
    A('ds_write_b128 %s, %s offset:%d\ns_waitcnt lgkmcnt(0)\ns_barrier' % (T(2), vq(vACC), L_RED2))
    vGt, vUp = vT + 8, vT + 12
    red16(vGt, L_RED2, vK0, vT + 1)
    red16(vUp, L_RED2 + 64, vK0, vT + 1)
    rnd4(vGt, vT + 2); rnd4(vUp, vT + 2)
    vE = vT + 16
    for i in range(4): A('v_mul_f32 v%d, v%d, v%d' % (vE + i, vGt + i, vGt + i))
    A('v_mov_b32 %s, 0x3d372713' % T(2))
    for i in range(4): A('v_fma_f32 v%d, v%d, %s, 1.0' % (vE + i, vE + i, T(2)))
    for i in range(4): A('v_mul_f32 v%d, v%d, v%d' % (vE + i, vE + i, vGt + i))
    for i in range(4): A('v_mul_f32 v%d, 0x%x, v%d' % (vE + i, 0xC0135761, vE + i))
    for i in range(4): A('v_exp_f32 v%d, v%d' % (vE + i, vE + i))
    for i in range(4): A('v_add_f32 v%d, 1.0, v%d' % (vE + i, vE + i))
    for i in range(4): A('v_rcp_f32 v%d, v%d' % (vE + i, vE + i))
    for i in range(4): A('v_mul_f32 v%d, v%d, v%d' % (vGt + i, vGt + i, vE + i))
    rnd4(vGt, vT + 2)
    for i in range(4): A('v_mul_f32 v%d, v%d, v%d' % (vGt + i, vGt + i, vUp + i))
    for i in range(4): A('v_cvt_pk_bf16_f32 v%d, v%d, v%d' % (vGt + i, vGt + i, vGt + i))
    vAS = vK0
    for t in range(4):
        for r in range(4): A('v_and_b32 v%d, v%d, v%d' % (vAS + 4 * t + r, vMK[r], vGt + t))
    A('v_lshrrev_b32 %s, 4, v0\nv_lshl_add_u32 %s, v%d, 1, %s\nv_lshlrev_b32 %s, 4, %s' % (T(0), T(0), vC, T(0), T(0), T(0)))
    A('s_mul_i32 %s, %s, 2560\ns_lshl_b32 %s, %s, 8\ns_add_u32 %s, %s, %s\ns_add_u32 %s, %s, %d' % (sA, sF, sB, sWV, sA, sA, sB, sA, sA, WS_D))
    for t in range(4):
        for cbk in range(2):
            A('v_mfma_f32_16x16x32_bf16 %s, %s, %s, %s' % (vq(vACC + 4 * cbk), vq(vAS + 4 * t), vq(aW0 + 80 + 16 * cbk + 4 * t, 4, 'a'), '0' if t == 0 else vq(vACC + 4 * cbk)))
    A('s_cmp_ge_u32 %s, 2\ns_cbranch_scc1 L_d2' % sWV)
    for t in range(4):
        A('v_mfma_f32_16x16x32_bf16 %s, %s, %s, %s' % (vq(vACC + 8), vq(vAS + 4 * t), vq(aW0 + 80 + 32 + 4 * t, 4, 'a'), '0' if t == 0 else vq(vACC + 8)))
    A('L_d2:')
    for cbk in range(2):
        pair_sum(vACC + 4 * cbk, vT + 4); enc(vACC + 4 * cbk)
        setexec(0x00ff00ff)
        A('buffer_store_dwordx4 %s, %s, %s, %s offen offset:%d sc1' % (vq(vACC + 4 * cbk), T(0), sq(WS_SRD), sA, 1024 * cbk))
        setexec(-1)
    A('s_cmp_ge_u32 %s, 2\ns_cbranch_scc1 L_d3' % sWV)
    pair_sum(vACC + 8, vT + 4); enc(vACC + 8)
    setexec(0x00ff00ff)
    A('buffer_store_dwordx4 %s, %s, %s, %s offen offset:2048 sc1' % (vq(vACC + 8), T(0), sq(WS_SRD), sA))
    setexec(-1)
    A('L_d3:')
    stamp(7)
    A('s_branch L_fin')
    A('L_roleR:')
    sRW = 's88'
    A('s_sub_u32 %s, %s, 16\ns_lshl_b32 %s, %s, 3\ns_add_u32 %s, %s, %s\ns_lshl_b32 %s, %s, 2\ns_add_u32 %s, %s, %s' % (sRW, sKP, sRW, sRW, sRW, sRW, sS, sRW, sRW, sRW, sRW, sWV))
    srd(B_SRD, pX, 1280)
    A('s_lshl_b32 %s, %s, 6\ns_lshl_b32 %s, %s, 5' % (sCOL, sRW, sA, sRW))
    A('v_and_b32 %s, 3, v0\nv_lshlrev_b32 %s, 4, %s\nv_lshlrev_b32 %s, 3, %s' % (T(1), T(0), T(1), T(1), T(1)))
    A('buffer_load_dwordx2 %s, %s, %s, %s offen' % (vq(vAA, 2), T(1), sq(B_SRD), sA))
    gather_mod(vGA, 2, T(0), sCOL, None, G9)
    gather_mod(vSB, 5, T(0), sCOL, None, G9)
    unpack4(vXX, vAA)
    gather_y(vAA, T(0), sCOL, None, G9)
    resid(vXX, vGA, vAA, vT + 2)
    rnd4(vXX, vT + 2)
    A('v_lshrrev_b32 %s, 2, v0\nv_mul_u32_u24 %s, 2560, %s\nv_add_u32 %s, %s, %s' % (T(3), T(3), T(3), T(3), T(3), T(0)))
    A('s_add_u32 %s, %s, %d\ns_add_u32 %s, %s, 40960\ns_add_u32 %s, %s, 40960' % (sA, sCOL, WS_D, sB, sA, sC_, sB))
    def iss():
        for i, s in enumerate((sA, sB, sC_)):
            A('buffer_load_dwordx4 %s, %s, %s, %s offen sc1' % (vq(G9[i]), T(3), sq(WS_SRD), s))
    poll(iss, G9[:3], T(2))
    stamp(7)
    sum_gran(vAA, G9[:3])
    for pat in ('row_ror:4', 'row_ror:8'):
        for i in range(4): A('v_add_f32_dpp v%d, v%d, v%d %s %s' % (vAA + i, vAA + i, vAA + i, pat, DPP))
    for sw in ('v_permlane16_swap_b32', 'v_permlane32_swap_b32'):
        for i in range(4): A('v_mov_b32 v%d, v%d' % (vCB + i, vAA + i))
        for i in range(4): A('%s v%d, v%d' % (sw, vAA + i, vCB + i))
        for i in range(4): A('v_add_f32 v%d, v%d, v%d' % (vAA + i, vAA + i, vCB + i))
    rnd4(vAA, vT + 2)
    resid(vXX, vSB, vAA, vT + 2)
    A('v_cvt_pk_bf16_f32 %s, v%d, v%d\nv_cvt_pk_bf16_f32 %s, v%d, v%d' % (T(4), vXX, vXX + 1, T(5), vXX + 2, vXX + 3))
    srd(A_SRD, pOUT, 1280)
    A('s_lshl_b32 %s, %s, 5' % (sA, sRW))
    setexec(0xf)
    A('buffer_store_dwordx2 %s, %s, %s, %s offen' % (vq(vT + 4, 2), T(1), sq(A_SRD), sA))
    A('s_cmp_lg_u32 %s, 0\ns_cbranch_scc1 L_noepoch' % sRW)
    A('v_mov_b32 %s, s%d\nv_mov_b32 %s, 0' % (T(6), sT[0], T(7)))
    setexec(1)
    A('buffer_store_dword %s, %s, %s, 0 offen offset:%d sc1' % (T(6), T(7), sq(WS_SRD), WS_EPOCH))
    A('L_noepoch:')
    setexec(-1)
    A('L_fin:')
    if pad_to:
        if pad_wg >= 0: A('s_cmp_lg_u32 s2, %d\ns_cbranch_scc1 L_nopad' % pad_wg)
        pad(pad_to)
        A('L_nopad:')
    if diag:
        stamp(8)
        A('s_getreg_b32 %s, hwreg(HW_REG_XCC_ID)\nv_writelane_b32 v%d, %s, 15' % (sA, vSTAMP, sA))
        A('s_lshl_b32 %s, s2, 2\ns_add_u32 %s, %s, %s\ns_lshl_b32 %s, %s, 6\ns_add_u32 %s, %s, %d' % (sA, sA, sA, sWV, sA, sA, sA, sA, WS_STAMP))
        A('v_lshlrev_b32 %s, 2, v0' % T(0))
        setexec(0xffff)
        A('buffer_store_dword v%d, %s, %s, %s offen' % (vSTAMP, T(0), sq(WS_SRD), sA))
    A('s_waitcnt vmcnt(0)')
    A('L_done:\ns_endpgm')
    for n in slow:
        s0b, t1, t2 = vT + 2, vT + 3, vT + 4
        A('L_slow%d:' % n)
        A('v_max_f32_dpp v%d, v%d, v%d row_ror:8 %s' % (s0b, s0b, s0b, DPP))
        rows_op('v_max_f32', s0b, t1)
        A('v_mul_f32 v%d, v%d, v%d' % (t1, vLG2, s0b))
        A('v_sub_f32 v%d, %s, v%d\nv_exp_f32 v%d, v%d' % (t2, sML, t1, t2, t2))
        A('v_readfirstlane_b32 %s, v%d\nv_readfirstlane_b32 %s, v%d' % (sM, s0b, sML, t1))
        A('v_mul_f32 v%d, v%d, v%d' % (vLS, vLS, t2))
        for i in range(12): A('v_mul_f32 v%d, v%d, v%d' % (vACC + i, vACC + i, t2))
        A('s_branch L_back%d' % n)
    A('''.section .rodata,"a"
.p2align 6
.amdhsa_kernel %s_kernel
.amdhsa_next_free_vgpr 512
.amdhsa_next_free_sgpr 96
.amdhsa_accum_offset 256
.amdhsa_group_segment_fixed_size 0
.amdhsa_kernarg_size 112
.amdhsa_user_sgpr_count 2
.amdhsa_user_sgpr_kernarg_segment_ptr 1
.amdhsa_system_sgpr_workgroup_id_x 1
.amdhsa_float_denorm_mode_32 3
.end_amdhsa_kernel''' % NAME)
    return HEADER + A.text()

if __name__ == '__main__':
    import json
    out = sys.argv[1] if len(sys.argv) > 1 else 'cdna_kernels/%s.s' % NAME
    kw = json.loads(sys.argv[2]) if len(sys.argv) > 2 else {}
    open(out, 'w').write(gen(**kw))
```
